```python
import torch

def _softmax(x, axis=-1):
    return torch.softmax(x, dim=axis)
def _gelu(x):
    return torch.nn.functional.gelu(x, approximate="tanh")
def _silu(x):
    return torch.nn.functional.silu(x)
def _sigmoid(x):
    return torch.sigmoid(x)
def _layernorm(x, axis=-1, eps=1e-5):
    m = x.mean(dim=axis, keepdim=True)
    v = x.var(dim=axis, keepdim=True, unbiased=False)
    return (x - m) / torch.sqrt(v + eps)
def _scatter_add(tgt, idx, src, axis=0):
    return tgt.clone().index_add_(axis, idx, src)
def _segment_sum(src, seg, n):
    out = torch.zeros((n,) + src.shape[1:], dtype=src.dtype)
    return out.index_add_(0, seg, src)
def _pad(x, pw):
    flat = tuple(v for pair in reversed(pw) for v in pair)
    return torch.nn.functional.pad(x, flat)

kernel_name = 'gated_mix__linear_attn_block__ssm_conv_h3__prompt'

def setup_inputs():

    _w = (lambda a: (lambda t: t.to(torch.bfloat16) if t.is_floating_point() else t)(torch.as_tensor(a)))
    def _A_setup():
        B, S, D = 1, 2048, 1024
        return {
            "x": _w((lambda *s: torch.randn(*s, dtype=torch.bfloat16) * 0.05)(B, S, D)),
            "wqkv": _w((lambda *s: torch.randn(*s, dtype=torch.bfloat16) * 1.6)(D, 3 * D)),
            "wo": _w((lambda *s: torch.randn(*s, dtype=torch.bfloat16) * 0.05)(D, D)),
        }
    _A_in = _A_setup()

    def _B_setup():
        B, S, D = 1, 2048, 1024
        ks = 4
        return {
            "q": _w((lambda *s: torch.randn(*s, dtype=torch.bfloat16) * 0.05)(B, S, D)),
            "k": _w((lambda *s: torch.randn(*s, dtype=torch.bfloat16) * 0.8)(B, S, D)),
            "v": _w((lambda *s: torch.randn(*s, dtype=torch.bfloat16) * 0.4)(B, S, D)),
            "shift_k": _w((lambda *s: torch.randn(*s, dtype=torch.bfloat16) * 0.8)(D, ks) * 0.5),
            "ssm_k": _w((lambda *s: torch.randn(*s, dtype=torch.bfloat16) * 1.6)(D, S) * (1.0 / S ** 0.5)),
            "ssm_D": _w((lambda *s: torch.randn(*s, dtype=torch.bfloat16) * 0.4)(D)),
        }
    _B_in = _B_setup()

    return {
        "A_x": _A_in["x"],
        "A_wqkv": _A_in["wqkv"],
        "A_wo": _A_in["wo"],
        "B_q": _B_in["q"],
        "B_k": _B_in["k"],
        "B_v": _B_in["v"],
        "B_shift_k": _B_in["shift_k"],
        "B_ssm_k": _B_in["ssm_k"],
        "B_ssm_D": _B_in["ssm_D"],
        "gate_w": _w((lambda *s: torch.randn(*s, dtype=torch.bfloat16) * 0.05)(1024) * 16.0),
    }

def reference(A_x, A_wqkv, A_wo, B_q, B_k, B_v, B_shift_k, B_ssm_k, B_ssm_D, gate_w):
    def _A_ref(x, wqkv, wo):
        B, S, D = x.shape
        H = 32; Dh = D // H
        qkv = (lambda x, *d: x.permute(*d))((x @ wqkv).reshape(B, S, 3, H, Dh), 2, 0, 3, 1, 4)
        q, k, v = qkv[0], qkv[1], qkv[2]
        phi = lambda t: torch.where(t > 0, t + 1, torch.exp(t)) + 1e-6
        pq, pk = phi(q), phi(k)
        kv = torch.einsum("bhsd,bhse->bhde", pk, v)
        z = torch.einsum("bhsd->bhd", pk)
        num = torch.einsum("bhqd,bhde->bhqe", pq, kv)
        den = torch.einsum("bhqd,bhd->bhq", pq, z)[..., None] + 1e-6
        o = num / den
        return (lambda x, *d: x.permute(*d))(o, 0, 2, 1, 3).reshape(B, S, D) @ wo

    def _B_ref(q, k, v, shift_k, ssm_k, ssm_D):
        B, S, D = q.shape
        ks = shift_k.shape[-1]
        k_pad = _pad(k, ((0, 0), (ks - 1, 0), (0, 0)))
        k_shift = torch.zeros_like(k)
        for t in range(ks):
            k_shift = k_shift + k_pad[:, t:t + S, :] * shift_k[:, ks - 1 - t][None, None, :]
        kv = k_shift * v
        L = 2 * S
        kv_pad = _pad(kv, ((0, 0), (0, S), (0, 0)))
        kf_pad = _pad(ssm_k, ((0, 0), (0, S)))
        kv_f = (lambda x, axes=(-2,-1): torch.fft.rfft2(x.float(), dim=axes))(kv_pad[:, None, :, :], axes=(1, 2))
        kf_f = (lambda x, axes=(-2,-1): torch.fft.rfft2(x.float(), dim=axes))(kf_pad[:, None, :], axes=(1, 2))
        kf_f = (lambda x, *d: x.permute(*d))(kf_f, 1, 2, 0)
        y_f = kv_f * kf_f[None, :, :, :]
        y = (lambda x, s, axes=(-2,-1): torch.fft.irfft2(x, s=s, dim=axes).to(torch.bfloat16))(y_f, (1, L), axes=(1, 2))[:, 0, :S, :]
        y = y + kv * ssm_D[None, None, :]
        return q * y

    x = A_x
    g = _sigmoid((x * gate_w).sum(-1, keepdims=True))
    a = _A_ref(x, A_wqkv, A_wo)
    b = _B_ref(x, B_k, B_v, B_shift_k, B_ssm_k, B_ssm_D)
    return g * a + (1 - g) * b
```

```python
import sys

NAME = "gated_mix__linear_attn_block__ssm_conv_h3__prompt"

WS_PQ = 0
WS_O = 4 << 20
WS_UT = 8 << 20
WS_YT = 12 << 20
WS_KVP = 16 << 20
WS_ZP = 18 << 20
WS_G = (18 << 20) + (1 << 19)
WS_SIZE = 32 << 20

LOG2E = 0x3FB8AA3B
EPS6 = 0x358637BD


class Asm:
    def __init__(self):
        self.lines = []

    def __call__(self, s):
        for ln in s.split("\n"):
            ln = ln.strip()
            if ln:
                self.lines.append("  " + ln)

    def label(self, s):
        self.lines.append(s + ":")

    def raw(self, s):
        self.lines.append(s)

    def text(self):
        return "\n".join(self.lines) + "\n"


class VM:
    def __init__(self, a):
        self.a = a
        self.q = []

    def issue(self, tag):
        self.q.append(tag)

    def wait(self, tag):
        if tag not in self.q:
            return
        idx = max(i for i, t in enumerate(self.q) if t == tag)
        n = len(self.q) - 1 - idx
        self.a(f"s_waitcnt vmcnt({min(n, 63)})")
        self.q = self.q[idx + 1:]

    def has(self, tag):
        return tag in self.q


def srd(a, dst, src, size):
    a(f"s_mov_b32 s{dst}, s{src}")
    a(f"s_and_b32 s{dst+1}, s{src+1}, 0xffff")
    a(f"s_mov_b32 s{dst+2}, {size:#x}")
    a(f"s_mov_b32 s{dst+3}, 0x20000")


def vr(b, n=4):
    return f"v[{b}:{b+n-1}]"


def kernel_head(a, name):
    a.raw(f".globl {name}")
    a.raw(".p2align 8")
    a.raw(f".type {name},@function")
    a.label(name)


def kernel_desc(name, vgpr=256):
    return f""".amdhsa_kernel {name}
  .amdhsa_next_free_vgpr {vgpr}
  .amdhsa_next_free_sgpr 102
  .amdhsa_accum_offset {vgpr}
  .amdhsa_group_segment_fixed_size 0
  .amdhsa_kernarg_size 104
  .amdhsa_user_sgpr_count 2
  .amdhsa_user_sgpr_kernarg_segment_ptr 1
  .amdhsa_system_sgpr_workgroup_id_x 1
  .amdhsa_float_denorm_mode_32 3
.end_amdhsa_kernel
"""


K1_NS = 3
K1_STAGE = 40960
K1_LDS = K1_NS * K1_STAGE


def phi16(a, acc, tmp, s_log2e, s_eps):
    for r in range(16):
        a(f"v_mul_f32 v{tmp+r}, s{s_log2e}, v{acc+r}")
    for r in range(16):
        a(f"v_exp_f32 v{tmp+r}, v{tmp+r} clamp")
    for r in range(16):
        a(f"v_add_f32 v{acc+r}, 1.0, v{acc+r}")
    for r in range(16):
        a(f"v_max_f32 v{acc+r}, v{acc+r}, v{tmp+r}")
    for r in range(16):
        a(f"v_add_f32 v{acc+r}, s{s_eps}, v{acc+r}")


def pack16(a, acc, dst):
    for r in range(8):
        a(f"v_cvt_pk_bf16_f32 v{dst+r}, v{acc+2*r}, v{acc+2*r+1}")


def gen_k1(cfg):
    a = Asm()
    name = NAME + "_kernel"
    kernel_head(a, name)
    NS = K1_NS
    a("""
    s_cmp_ge_u32 s2, 256
    s_cbranch_scc1 L1_end
    s_load_dwordx4 s[4:7], s[0:1], 0
    s_load_dwordx4 s[40:43], s[0:1], 32
    s_load_dwordx2 s[44:45], s[0:1], 48
    s_load_dwordx2 s[46:47], s[0:1], 72
    s_load_dwordx2 s[48:49], s[0:1], 96
    v_lshrrev_b32 v1, 6, v0
    v_and_b32 v0, 63, v0
    s_and_b32 s52, s2, 7
    v_readfirstlane_b32 s50, v1
    s_lshr_b32 s53, s2, 3
    s_and_b32 s54, s52, 1
    s_lshl_b32 s54, s54, 3
    s_and_b32 s55, s53, 7
    s_add_u32 s54, s54, s55
    s_lshr_b32 s55, s52, 1
    s_lshl_b32 s55, s55, 2
    s_lshr_b32 s56, s53, 3
    s_add_u32 s55, s55, s56
    """)
    rot = cfg.get("rot", 0)
    if rot == 0:
        a("s_mov_b32 s57, 0")
    elif rot == 1:
        a("s_lshl_b32 s57, s52, 1")
    elif rot == 2:
        a("s_add_u32 s57, s54, s55\ns_and_b32 s57, s57, 15")
    a("s_waitcnt lgkmcnt(0)")
    srd(a, 8, 4, 4 << 20)
    srd(a, 12, 6, 6 << 20)
    srd(a, 24, 48, WS_SIZE)
    a("s_cmp_ge_u32 s50, 4\ns_cbranch_scc1 L1_helper")

    ACCQ, ACCK, ACCV = 0, 32, 64
    FS = [96, 116]
    AD = 136
    LANE = 152
    a(f"v_mov_b32 v{LANE}, v0")
    a(f"""
    s_and_b32 s58, s50, 1
    s_lshr_b32 s59, s50, 1
    v_and_b32 v1, 31, v{LANE}
    v_lshrrev_b32 v2, 5, v{LANE}
    v_lshrrev_b32 v3, 1, v1
    v_and_b32 v3, 7, v3
    s_lshl_b32 s60, s59, 13
    v_lshlrev_b32 v4, 7, v1
    v_add_u32 v4, s60, v4
    """)
    for kk in range(4):
        a(f"v_or_b32 v5, {2*kk}, v2")
        a("v_xor_b32 v5, v5, v3")
        a("v_lshlrev_b32 v5, 4, v5")
        a(f"v_add_u32 v{AD+kk}, v4, v5")
    a(f"""
    v_bfe_u32 v3, v{LANE}, 2, 2
    v_lshlrev_b32 v4, 3, v2
    v_add_u32 v4, v4, v3
    v_lshlrev_b32 v4, 7, v4
    v_lshrrev_b32 v3, 1, v3
    v_xor_b32 v3, s58, v3
    v_lshlrev_b32 v3, 6, v3
    v_add_u32 v4, v4, v3
    v_bfe_u32 v3, v{LANE}, 4, 1
    v_lshlrev_b32 v3, 5, v3
    v_add_u32 v4, v4, v3
    v_and_b32 v3, 3, v{LANE}
    v_lshlrev_b32 v3, 3, v3
    v_add_u32 v4, v4, v3
    v_add_u32 v{AD+4}, 16384, v4
    """)
    for sl in range(1, NS):
        for i in range(5):
            a(f"v_add_u32 v{AD+5*sl+i}, {sl*K1_STAGE}, v{AD+i}")

    def reads(stage, kk, fs):
        sl = stage % NS
        xa = AD + 5 * sl + kk
        wa = AD + 5 * sl + 4
        X0, X1, WQ, WK, WV = fs, fs + 4, fs + 8, fs + 12, fs + 16
        r = []
        r.append(f"ds_read_b64_tr_b16 {vr(WQ,2)}, v{wa} offset:{kk*2048}")
        r.append(f"ds_read_b64_tr_b16 {vr(WQ+2,2)}, v{wa} offset:{kk*2048+512}")
        r.append(f"ds_read_b128 {vr(X0)}, v{xa}")
        r.append(f"ds_read_b128 {vr(X1)}, v{xa} offset:4096")
        r.append(f"ds_read_b64_tr_b16 {vr(WK,2)}, v{wa} offset:{8192+kk*2048}")
        r.append(f"ds_read_b64_tr_b16 {vr(WK+2,2)}, v{wa} offset:{8192+kk*2048+512}")
        r.append(f"ds_read_b64_tr_b16 {vr(WV,2)}, v{wa} offset:{16384+kk*2048}")
        r.append(f"ds_read_b64_tr_b16 {vr(WV+2,2)}, v{wa} offset:{16384+kk*2048+512}")
        return r

    def mfmas(fs, first):
        X = [fs, fs + 4]
        WQ, WK, WV = fs + 8, fs + 12, fs + 16
        m = []
        for rt in range(2):
            c = "0" if first else vr(ACCQ + 16 * rt, 16)
            m.append(f"v_mfma_f32_32x32x16_bf16 {vr(ACCQ+16*rt,16)}, {vr(WQ)}, {vr(X[rt])}, {c}")
        for rt in range(2):
            c = "0" if first else vr(ACCK + 16 * rt, 16)
            m.append(f"v_mfma_f32_32x32x16_bf16 {vr(ACCK+16*rt,16)}, {vr(X[rt])}, {vr(WK)}, {c}")
        for rt in range(2):
            c = "0" if first else vr(ACCV + 16 * rt, 16)
            m.append(f"v_mfma_f32_32x32x16_bf16 {vr(ACCV+16*rt,16)}, {vr(X[rt])}, {vr(WV)}, {c}")
        return m

    a("s_barrier")
    for r in reads(0, 0, FS[0]):
        a(r)
    j = 0
    for st in range(16):
        for kk in range(4):
            m = mfmas(FS[j & 1], j == 0)
            last = (st == 15 and kk == 3)
            if last:
                a("s_waitcnt lgkmcnt(0)")
                for x in m:
                    a(x)
            elif kk < 3:
                rd = reads(st, kk + 1, FS[(j + 1) & 1])
                a("s_waitcnt lgkmcnt(5)")
                a(m[0]); a(rd[0]); a(rd[1])
                a("s_waitcnt lgkmcnt(6)")
                a(m[1]); a(rd[2]); a(rd[3])
                a("s_waitcnt lgkmcnt(6)")
                a(m[2]); a(rd[4]); a(rd[5])
                a(m[3]); a(rd[6]); a(rd[7])
                a("s_waitcnt lgkmcnt(8)")
                a(m[4]); a(m[5])
            else:
                rd = reads(st + 1, 0, FS[(j + 1) & 1])
                a("s_waitcnt lgkmcnt(0)")
                a(m[0]); a(m[1])
                a("s_barrier")
                a(rd[0]); a(rd[1])
                a(m[2]); a(rd[2]); a(rd[3])
                a(m[3]); a(rd[4]); a(rd[5])
                a(m[4]); a(rd[6]); a(rd[7])
                a(m[5])
            j += 1

    TMP = 96
    PK = 112
    PV = 128
    ONES = 144
    KV = 160
    ZZ = 176
    VA = 192
    a(f"""
    s_mov_b32 s60, {LOG2E:#x}
    s_mov_b32 s61, {EPS6:#x}
    s_lshl_b32 s62, s55, 1
    s_add_u32 s62, s62, s58
    s_lshl_b32 s63, s54, 2
    s_lshl_b32 s64, s59, 1
    s_add_u32 s63, s63, s64
    s_lshl_b32 s64, s62, 6
    s_add_u32 s64, s64, s63
    s_lshl_b32 s64, s64, 11
    v_lshlrev_b32 v{VA}, 4, v{LANE}
    v_mov_b32 v{ONES}, 0x3f803f80
    v_mov_b32 v{ONES+1}, 0x3f803f80
    v_mov_b32 v{ONES+2}, 0x3f803f80
    v_mov_b32 v{ONES+3}, 0x3f803f80
    s_nop 7
    """)
    for rt in range(2):
        phi16(a, ACCQ + 16 * rt, TMP, 60, 61)
        pack16(a, ACCQ + 16 * rt, TMP)
        a(f"buffer_store_dwordx4 {vr(TMP)}, v{VA}, s[24:27], s64 offen offset:{rt*2048}")
        a(f"buffer_store_dwordx4 {vr(TMP+4)}, v{VA}, s[24:27], s64 offen offset:{rt*2048+1024}")
        a("s_nop 1")
    for rt in range(2):
        phi16(a, ACCK + 16 * rt, TMP, 60, 61)
        pack16(a, ACCK + 16 * rt, PK + 8 * rt)
        pack16(a, ACCV + 16 * rt, PV + 8 * rt)
    a("s_nop 1")
    i = 0
    for rt in range(2):
        for kk in range(2):
            c = "0" if i == 0 else vr(KV, 16)
            a(f"v_mfma_f32_32x32x16_bf16 {vr(KV,16)}, {vr(PK+8*rt+4*kk)}, {vr(PV+8*rt+4*kk)}, {c}")
            i += 1
    i = 0
    for rt in range(2):
        for kk in range(2):
            c = "0" if i == 0 else vr(ZZ, 16)
            a(f"v_mfma_f32_32x32x16_bf16 {vr(ZZ,16)}, {vr(PK+8*rt+4*kk)}, {vr(ONES)}, {c}")
            i += 1
    XB = K1_STAGE
    a(f"""
    s_lshl_b32 s65, s58, 13
    s_add_u32 s65, s65, {XB}
    v_add_u32 v{VA+1}, s65, v{VA}
    s_nop 15
    s_cmp_eq_u32 s59, 0
    s_cbranch_scc1 L1_lower
    """)
    for q in range(4):
        a(f"ds_write_b128 v{VA+1}, {vr(KV+4*q)} offset:{q*1024}")
    for q in range(4):
        a(f"ds_write_b128 v{VA+1}, {vr(ZZ+4*q)} offset:{4096+q*1024}")
    a("s_waitcnt lgkmcnt(0)\ns_barrier\ns_endpgm")
    a.label("L1_lower")
    a("s_barrier")
    for q in range(8):
        a(f"ds_read_b128 {vr(TMP+4*q)}, v{VA+1} offset:{q*1024}")
    a(f"""
    s_lshl_b32 s65, s54, 5
    s_add_u32 s65, s65, s62
    s_lshl_b32 s66, s65, 12
    s_add_u32 s66, s66, {WS_KVP:#x}
    s_lshl_b32 s67, s65, 7
    s_add_u32 s67, s67, {WS_ZP:#x}
    s_waitcnt lgkmcnt(0)
    """)
    for r in range(16):
        a(f"v_add_f32 v{KV+r}, v{KV+r}, v{TMP+r}")
    for r in range(16):
        a(f"v_add_f32 v{ZZ+r}, v{ZZ+r}, v{TMP+16+r}")
    for q in range(4):
        a(f"buffer_store_dwordx4 {vr(KV+4*q)}, v{VA}, s[24:27], s66 offen offset:{q*1024}")
    a(f"""
    v_lshrrev_b32 v{VA+2}, 5, v{LANE}
    v_lshlrev_b32 v{VA+2}, 6, v{VA+2}
    v_and_b32 v{VA+3}, 31, v{LANE}
    v_cmp_eq_u32 vcc, 0, v{VA+3}
    s_and_saveexec_b64 s[68:69], vcc
    s_cbranch_execz L1_end
    """)
    for q in range(4):
        a(f"buffer_store_dwordx4 {vr(ZZ+4*q)}, v{VA+2}, s[24:27], s67 offen offset:{q*16}")
    a("s_endpgm")

    a.label("L1_helper")
    vm = VM(a)
    srd(a, 16, 40, 4 << 20)
    srd(a, 20, 42, 4 << 20)
    srd(a, 28, 44, 8192)
    srd(a, 32, 46, 2048)
    XG0, XG1, WG = 1, 2, 3
    a(f"""
    s_sub_u32 s50, s50, 4
    v_lshrrev_b32 v4, 3, v0
    v_and_b32 v5, 7, v0
    v_lshrrev_b32 v6, 4, v0
    v_xor_b32 v7, v5, v6
    v_lshlrev_b32 v7, 4, v7
    v_lshlrev_b32 v8, 11, v4
    v_add_u32 v{XG0}, v7, v8
    v_xor_b32 v{XG1}, 64, v{XG0}
    v_and_b32 v6, 1, v6
    v_lshlrev_b32 v6, 2, v6
    v_xor_b32 v7, v5, v6
    v_lshlrev_b32 v7, 4, v7
    v_mul_u32_u24 v8, 6144, v4
    v_add_u32 v{WG}, v7, v8
    s_lshl_b32 s58, s54, 18
    s_lshl_b32 s59, s50, 16
    s_add_u32 s58, s58, s59
    s_lshl_b32 s59, s50, 12
    s_mul_i32 s66, s50, 6144
    s_add_u32 s66, s66, 16384
    """)
    for i in range(6):
        a(f"""
        s_mul_i32 s67, s50, 6
        s_add_u32 s67, s67, {i}
        s_lshr_b32 s68, s67, 3
        s_lshl_b32 s68, s68, 11
        s_and_b32 s67, s67, 7
        s_mul_i32 s67, s67, 49152
        s_add_u32 s67, s67, s68
        s_lshl_b32 s68, s55, 7
        s_add_u32 s{60+i}, s67, s68
        """)

    def issue_stage(t):
        sl = t % NS
        a(f"s_add_u32 s67, s57, {t}\ns_and_b32 s67, s67, 15\ns_lshl_b32 s68, s67, 7")
        a("s_mul_i32 s69, s67, 393216\ns_add_u32 s68, s68, s58")
        for i in range(4):
            a(f"s_add_u32 m0, s59, {sl*K1_STAGE + i*1024}")
            a(f"s_add_u32 s70, s68, {i*16384}")
            a(f"buffer_load_dwordx4 v{XG0 if i % 2 == 0 else XG1}, s[8:11], s70 offen lds")
            vm.issue(("st", t))
        for i in range(6):
            a(f"s_add_u32 m0, s66, {sl*K1_STAGE + i*1024}")
            a(f"s_add_u32 s70, s69, s{60+i}")
            a(f"buffer_load_dwordx4 v{WG}, s[12:15], s70 offen lds")
            vm.issue(("st", t))

    for t in range(NS):
        issue_stage(t)

    KR = 16
    VR = 40
    WT = 56
    GX = 64
    GW = 80
    KA, KB, SKA, GA, UA = 10, 11, 12, 13, 14
    T = 96
    a(f"""
    v_and_b32 v4, 15, v0
    v_lshrrev_b32 v5, 4, v0
    s_lshl_b32 s71, s50, 2
    v_add_u32 v5, s71, v5
    s_lshl_b32 s72, s54, 4
    v_add_u32 v5, s72, v5
    s_lshl_b32 s73, s55, 6
    v_lshlrev_b32 v6, 2, v4
    v_add_u32 v6, s73, v6
    v_lshlrev_b32 v7, 14, v5
    v_lshlrev_b32 v8, 1, v6
    v_add_u32 v{KB}, v7, v8
    v_subrev_u32 v{KA}, 6144, v{KB}
    v_lshlrev_b32 v{SKA}, 3, v6
    v_lshlrev_b32 v{GA}, 5, v0
    v_lshlrev_b32 v7, 12, v6
    v_lshlrev_b32 v8, 4, v5
    v_add_u32 v{UA}, v7, v8
    s_mov_b32 s74, 4096
    s_mov_b32 s75, 8192
    s_mov_b32 s76, 12288
    s_lshl_b32 s77, s54, 7
    s_lshl_b32 s78, s55, 3
    s_add_u32 s77, s77, s78
    s_lshl_b32 s78, s50, 1
    s_add_u32 s77, s77, s78
    s_lshl_b32 s78, s77, 11
    s_add_u32 s79, s78, 2048
    """)
    soff = ["0", "s74", "s75", "s76"]

    def rowload(dst, va, sr, i):
        a(f"buffer_load_dwordx2 {vr(dst,2)}, v{va}, s[{sr}:{sr+3}], {soff[i//2]} offen offset:{(i%2)*2048}")
        vm.issue("pre")

    for i in range(3):
        rowload(KR + 2 * i, KA, 16, i)
    for i in range(8):
        rowload(KR + 6 + 2 * i, KB, 16, i)
    for i in range(8):
        rowload(VR + 2 * i, KB, 20, i)
    for i in range(2):
        a(f"buffer_load_dwordx4 {vr(WT+4*i)}, v{SKA}, s[28:31], 0 offen offset:{16*i}")
        vm.issue("pre")
    for r in range(2):
        for i in range(2):
            a(f"buffer_load_dwordx4 {vr(GX+8*r+4*i)}, v{GA}, s[8:11], s{78+r} offen offset:{16*i}")
            vm.issue("pre")
    for i in range(2):
        a(f"buffer_load_dwordx4 {vr(GW+4*i)}, v{GA}, s[32:35], 0 offen offset:{16*i}")
        vm.issue("pre")

    def unpack(dst, src, half):
        if half == 0:
            a(f"v_lshlrev_b32 v{dst}, 16, v{src}")
        else:
            a(f"v_and_b32 v{dst}, 0xffff0000, v{src}")

    def prepass_channel(j):
        dw, half = j >> 1, j & 1
        W = T
        Kf = T + 4
        Of = T + 16
        P = T + 24
        for tau in range(4):
            unpack(W + tau, WT + 2 * j + (tau >> 1), tau & 1)
        for i in range(11):
            unpack(Kf + i, KR + 2 * i + dw, half)
        for i in range(8):
            a(f"v_mul_f32 v{Of+i}, v{W+3}, v{Kf+i}")
        for tau in (2, 1, 0):
            for i in range(8):
                a(f"v_fmac_f32 v{Of+i}, v{W+tau}, v{Kf+i+3-tau}")
        for i in range(8):
            unpack(Kf + i, VR + 2 * i + dw, half)
        for i in range(8):
            a(f"v_mul_f32 v{Of+i}, v{Of+i}, v{Kf+i}")
        for m in range(4):
            a(f"v_cvt_pk_bf16_f32 v{P+m}, v{Of+7-2*m}, v{Of+6-2*m}")
        a(f"s_mov_b32 s80, {WS_UT + j*4096:#x}")
        a(f"buffer_store_dwordx4 {vr(P)}, v{UA}, s[24:27], s80 offen")
        vm.issue("ut")

    def gate():
        Z = T + 32
        for r in range(2):
            a(f"v_mov_b32 v{Z+r}, 0")
        for i in range(8):
            for r in range(2):
                a(f"v_dot2_f32_bf16 v{Z+r}, v{GX+8*r+i}, v{GW+i}, v{Z+r}")
        for ctl in ("row_shr:1 row_mask:0xf", "row_shr:2 row_mask:0xf", "row_shr:4 row_mask:0xf",
                    "row_shr:8 row_mask:0xf", "row_bcast:15 row_mask:0xa", "row_bcast:31 row_mask:0xc"):
            a("s_nop 1")
            for r in range(2):
                a(f"v_add_f32_dpp v{Z+r}, v{Z+r}, v{Z+r} {ctl} bank_mask:0xf")
        a(f"s_mov_b32 s80, {LOG2E ^ 0x80000000:#x}")
        for r in range(2):
            a(f"v_mul_f32 v{Z+r}, s80, v{Z+r}")
        for r in range(2):
            a(f"v_exp_f32 v{Z+r}, v{Z+r}")
        a("s_nop 0")
        for r in range(2):
            a(f"v_add_f32 v{Z+r}, 1.0, v{Z+r}")
        for r in range(2):
            a(f"v_rcp_f32 v{Z+r}, v{Z+r}")
        a(f"""
        s_lshl_b32 s80, s77, 2
        s_add_u32 s80, s80, {WS_G:#x}
        v_mov_b32 v{Z+2}, 0
        v_cmp_eq_u32 vcc, 63, v0
        s_and_saveexec_b64 s[82:83], vcc
        buffer_store_dwordx2 {vr(Z,2)}, v{Z+2}, s[24:27], s80 offen
        s_mov_b64 exec, s[82:83]
        """)
        vm.issue("g")

    side = {4: lambda: prepass_channel(0), 5: lambda: prepass_channel(1), 6: lambda: prepass_channel(2),
            7: lambda: prepass_channel(3), 8: gate}
    for b in range(16):
        vm.wait(("st", b))
        a("s_barrier")
        if b >= 1 and b - 1 + NS <= 15:
            issue_stage(b - 1 + NS)
        if b in side:
            if vm.has("pre"):
                vm.wait("pre")
            side[b]()
    a.label("L1_end")
    a("s_endpgm")
    return a.text(), kernel_desc(name)


K2_COPY = 4160
K2_U = 4 * K2_COPY
K2_CH = K2_U + 512 + 4096
K2_OB = 4 * K2_CH
K2_LDS = K2_OB + 4096


def gen_k2(cfg):
    a = Asm()
    name = "k2_kernel"
    kernel_head(a, name)
    a("""
    s_cmp_ge_u32 s2, 256
    s_cbranch_scc1 L2_end
    s_load_dwordx4 s[4:7], s[0:1], 56
    s_load_dwordx2 s[48:49], s[0:1], 96
    v_lshrrev_b32 v1, 6, v0
    v_and_b32 v0, 63, v0
    s_nop 0
    v_readfirstlane_b32 s50, v1
    s_waitcnt lgkmcnt(0)
    """)
    srd(a, 24, 48, WS_SIZE)
    a("s_cmp_ge_u32 s50, 4\ns_cbranch_scc1 L2_otask")
    srd(a, 8, 4, 4 << 20)
    srd(a, 12, 6, 2048)
    vm = VM(a)
    ACC = 0
    AF = [32, 96]
    BF = [64, 128]
    AP = 160
    VA, VB, VY = 164, 165, 166
    a(f"""
    s_lshl_b32 s51, s2, 2
    s_add_u32 s51, s51, s50
    s_mul_i32 s52, s50, {K2_CH}
    s_lshl_b32 s53, s51, 12
    v_lshlrev_b32 v1, 4, v0
    """)
    a(f"""
    v_lshrrev_b32 v2, 4, v0
    v_and_b32 v3, 15, v0
    v_add_u32 v4, v2, v3
    v_subrev_u32 v4, 15, v4
    v_max_i32 v5, 0, v4
    v_lshlrev_b32 v5, 1, v5
    buffer_load_ushort v6, v5, s[8:11], s53 offen
    s_lshl_b32 s54, s51, 1
    v_mov_b32 v7, 0
    buffer_load_ushort v8, v7, s[12:15], s54 offen
    """)
    vm.issue("fix"); vm.issue("fix")
    for cc in range(4):
        for j in range(4):
            a(f"s_add_u32 m0, s52, {cc*K2_COPY + 32 + j*1024}")
            a(f"s_add_u32 s54, s53, {32 + j*1024 + 2*(cc-15)}")
            a("buffer_load_dwordx4 v1, s[8:11], s54 offen lds")
            vm.issue("h")
    for j in range(4):
        a(f"s_add_u32 m0, s52, {K2_U + 512 + j*1024}")
        a(f"s_add_u32 s54, s53, {WS_UT + j*1024}")
        a("buffer_load_dwordx4 v1, s[24:27], s54 offen lds")
        vm.issue("u")
    a(f"""
    v_and_b32 v9, 31, v0
    v_lshlrev_b32 v9, 4, v9
    s_add_u32 s55, s52, {K2_U}
    v_add_u32 v9, s55, v9
    v_mov_b32 v10, 0
    v_mov_b32 v11, 0
    v_mov_b32 v12, 0
    v_mov_b32 v13, 0
    ds_write_b128 v9, v[10:13]
    v_mul_u32_u24 v14, {K2_COPY}, v2
    v_lshlrev_b32 v15, 1, v3
    v_add_u32 v14, v14, v15
    v_add_u32 v14, s52, v14
    v_and_b32 v16, 3, v3
    v_mul_u32_u24 v16, {K2_COPY}, v16
    v_lshlrev_b32 v17, 4, v2
    v_add_u32 v16, v16, v17
    v_lshrrev_b32 v17, 2, v3
    v_lshlrev_b32 v17, 3, v17
    v_add_u32 v16, v16, v17
    v_add_u32 v{VA}, s52, v16
    v_lshlrev_b32 v16, 1, v3
    v_add_u32 v16, 1, v16
    v_sub_u32 v16, v16, v2
    v_lshlrev_b32 v16, 4, v16
    s_add_u32 s55, s55, 64
    v_add_u32 v{VB}, s55, v16
    v_lshlrev_b32 v16, 5, v3
    v_lshlrev_b32 v17, 3, v2
    v_add_u32 v{VY}, v16, v17
    """)
    vm.wait("fix")
    a(f"""
    v_cmp_gt_i32 vcc, 0, v4
    v_sub_u32 v16, 15, v3
    v_lshrrev_b32 v17, 3, v16
    v_cndmask_b32 v6, v6, v10, vcc
    v_and_b32 v18, 1, v16
    v_lshlrev_b32 v18, 4, v18
    v_lshlrev_b32 v8, v18, v8
    v_cmp_eq_u32 vcc, v17, v2
    v_bfe_u32 v19, v16, 1, 2
    s_nop 0
    v_cndmask_b32 v8, v10, v8, vcc
    """)
    for m in range(4):
        a(f"v_cmp_eq_u32 vcc, {m}, v19")
        a("s_nop 1")
        a(f"v_cndmask_b32 v{AP+m}, v10, v8, vcc")
    a("ds_write_b16 v14, v6")
    vm.wait("u")
    a("s_waitcnt lgkmcnt(0)")
    a("s_barrier")

    def rd(rho, s):
        r = []
        order = []
        for T in range(8):
            order.append(("B", T))
            order.append(("A", T))
        for kind, i in order:
            if kind == "A":
                n = 8 * i + rho
                r.append(f"ds_read_b64 {vr(AF[s]+4*i,2)}, v{VA} offset:{64*n}")
                r.append(f"ds_read_b64 {vr(AF[s]+4*i+2,2)}, v{VA} offset:{64*n+8}")
            else:
                r.append(f"ds_read_b128 {vr(BF[s]+4*i)}, v{VB} offset:{512*i + 64*(7-rho)}")
        return r

    def mm(rho, s):
        m = []
        for T in range(8):
            for i in range(T + 1):
                c = "0" if (rho == 0 and i == 0) else vr(ACC + 4 * T)
                m.append(f"v_mfma_f32_16x16x32_bf16 {vr(ACC+4*T)}, {vr(AF[s]+4*i)}, {vr(BF[s]+4*(T-i))}, {c}")
            if rho == 0:
                m.append(f"v_mfma_f32_16x16x32_bf16 {vr(ACC+4*T)}, {vr(AP)}, {vr(BF[s]+4*T)}, {vr(ACC+4*T)}")
        return m

    for x in rd(0, 0):
        a(x)
    for rho in range(8):
        s = rho & 1
        m = mm(rho, s)
        a("s_waitcnt lgkmcnt(0)")
        nxt = rd(rho + 1, s ^ 1) if rho < 7 else []
        k = 0
        for i, x in enumerate(m):
            a(x)
            if k < len(nxt):
                a(nxt[k]); k += 1
        assert k == len(nxt)
    a("s_nop 7\ns_nop 3")
    a(f"s_add_u32 s54, s53, {WS_YT:#x}")
    for T in range(8):
        a(f"v_cvt_pk_bf16_f32 v{32+2*T}, v{ACC+4*T}, v{ACC+4*T+1}")
        a(f"v_cvt_pk_bf16_f32 v{33+2*T}, v{ACC+4*T+2}, v{ACC+4*T+3}")
    for T in range(8):
        a(f"buffer_store_dwordx2 {vr(32+2*T,2)}, v{VY}, s[24:27], s54 offen offset:{512*T}")
    a("s_endpgm")

    a.label("L2_otask")
    KP = 16
    ZPr = 80
    PQ = 144
    a(f"""
    s_sub_u32 s50, s50, 4
    s_lshr_b32 s51, s2, 3
    s_and_b32 s52, s2, 7
    v_lshlrev_b32 v1, 4, v0
    v_lshrrev_b32 v2, 5, v0
    v_lshlrev_b32 v2, 6, v2
    s_lshl_b32 s53, s51, 12
    s_lshl_b32 s54, s50, 10
    s_add_u32 s53, s53, s54
    s_add_u32 s53, s53, {WS_KVP:#x}
    s_lshl_b32 s54, s51, 7
    s_lshl_b32 s55, s50, 4
    s_add_u32 s54, s54, s55
    s_add_u32 s54, s54, {WS_ZP:#x}
    s_lshl_b32 s55, s52, 3
    s_lshl_b32 s56, s50, 1
    s_add_u32 s55, s55, s56
    s_lshl_b32 s56, s51, 6
    s_add_u32 s56, s56, s55
    s_lshl_b32 s56, s56, 11
    """)
    for p in range(16):
        a(f"s_add_u32 s57, s53, {p*32*4096}")
        a(f"buffer_load_dwordx4 {vr(KP+4*p)}, v1, s[24:27], s57 offen")
    for p in range(16):
        a(f"s_add_u32 s57, s54, {p*32*128}")
        a(f"buffer_load_dwordx4 {vr(ZPr+4*p)}, v2, s[24:27], s57 offen")
    for i in range(4):
        a(f"buffer_load_dwordx4 {vr(PQ+4*i)}, v1, s[24:27], s56 offen offset:{i*1024}")
    a("s_waitcnt vmcnt(20)")
    for p in range(1, 16):
        for r in range(4):
            a(f"v_add_f32 v{KP+r}, v{KP+r}, v{KP+4*p+r}")
    a("s_waitcnt vmcnt(4)")
    for p in range(1, 16):
        for r in range(4):
            a(f"v_add_f32 v{ZPr+r}, v{ZPr+r}, v{ZPr+4*p+r}")
    a(f"""
    v_cvt_pk_bf16_f32 v4, v{KP}, v{KP+1}
    v_cvt_pk_bf16_f32 v5, v{KP+2}, v{KP+3}
    v_cvt_pk_bf16_f32 v6, v{ZPr}, v{ZPr+1}
    v_cvt_pk_bf16_f32 v7, v{ZPr+2}, v{ZPr+3}
    s_lshr_b32 s57, s50, 1
    s_lshl_b32 s57, s57, 10
    s_and_b32 s58, s50, 1
    s_lshl_b32 s58, s58, 3
    s_add_u32 s57, s57, s58
    s_add_u32 s57, s57, {K2_OB}
    v_add_u32 v3, s57, v1
    ds_write_b64 v3, v[4:5]
    ds_write_b64 v3, v[6:7] offset:2048
    s_waitcnt lgkmcnt(0)
    s_barrier
    v_add_u32 v3, {K2_OB}, v1
    ds_read_b128 v[16:19], v3
    ds_read_b128 v[20:23], v3 offset:1024
    ds_read_b128 v[24:27], v3 offset:2048
    ds_read_b128 v[28:31], v3 offset:3072
    s_waitcnt vmcnt(0) lgkmcnt(0)
    """)
    NUM = [32, 64]
    DEN = [48, 80]
    for t in range(2):
        a(f"v_mfma_f32_32x32x16_bf16 {vr(NUM[t],16)}, v[16:19], {vr(PQ+8*t)}, 0")
        a(f"v_mfma_f32_32x32x16_bf16 {vr(NUM[t],16)}, v[20:23], {vr(PQ+8*t+4)}, {vr(NUM[t],16)}")
        a(f"v_mfma_f32_32x32x16_bf16 {vr(DEN[t],16)}, v[24:27], {vr(PQ+8*t)}, 0")
        a(f"v_mfma_f32_32x32x16_bf16 {vr(DEN[t],16)}, v[28:31], {vr(PQ+8*t+4)}, {vr(DEN[t],16)}")
    a(f"""
    s_mov_b32 s60, {EPS6:#x}
    s_lshl_b32 s57, s55, 5
    s_add_u32 s57, s57, s51
    s_lshl_b32 s57, s57, 11
    s_add_u32 s57, s57, {WS_O:#x}
    s_add_u32 s58, s57, {32*2048}
    s_nop 15
    """)
    for t in range(2):
        a(f"v_add_f32 v{DEN[t]}, s60, v{DEN[t]}")
        a(f"v_rcp_f32 v{DEN[t]}, v{DEN[t]}")
        a("s_nop 0")
        for r in range(16):
            a(f"v_mul_f32 v{NUM[t]+r}, v{NUM[t]+r}, v{DEN[t]}")
        pack16(a, NUM[t], 96 + 8 * t)
        a(f"buffer_store_dwordx4 {vr(96+8*t)}, v1, s[24:27], s{57+t} offen")
        a(f"buffer_store_dwordx4 {vr(100+8*t)}, v1, s[24:27], s{57+t} offen offset:1024")
    a.label("L2_end")
    a("s_endpgm")
    return a.text(), kernel_desc(name)


K3_Y = 131072
K3_LDS = K3_Y + 16384


def gen_k3(cfg):
    a = Asm()
    name = "k3_kernel"
    kernel_head(a, name)
    NG = 8
    a("""
    s_cmp_ge_u32 s2, 256
    s_cbranch_scc1 L3_end
    s_load_dwordx2 s[4:5], s[0:1], 0
    s_load_dwordx2 s[6:7], s[0:1], 16
    s_load_dwordx2 s[44:45], s[0:1], 80
    s_load_dwordx2 s[48:49], s[0:1], 96
    v_lshrrev_b32 v1, 6, v0
    v_and_b32 v0, 63, v0
    s_and_b32 s52, s2, 7
    v_readfirstlane_b32 s50, v1
    s_lshr_b32 s53, s2, 3
    s_and_b32 s54, s52, 3
    s_lshl_b32 s54, s54, 2
    s_and_b32 s55, s53, 3
    s_add_u32 s54, s54, s55
    s_lshr_b32 s55, s52, 2
    s_lshl_b32 s55, s55, 3
    s_lshr_b32 s56, s53, 2
    s_add_u32 s55, s55, s56
    s_waitcnt lgkmcnt(0)
    """)
    srd(a, 24, 48, WS_SIZE)
    a("s_cmp_ge_u32 s50, 4\ns_cbranch_scc1 L3_loader")
    srd(a, 8, 4, 4 << 20)
    srd(a, 16, 44, 4 << 20)
    vm = VM(a)
    ACC = [0, 16]
    OF = 32
    PD = 12
    WF = [96, 104]
    XR = 112
    GR = 128
    WA = 130
    VO, VX = 134, 135
    LANE = 136
    a(f"""
    v_mov_b32 v{LANE}, v0
    s_lshl_b32 s57, s54, 2
    s_add_u32 s57, s57, s50
    s_lshl_b32 s58, s57, 16
    s_add_u32 s58, s58, {WS_O:#x}
    v_lshlrev_b32 v{VO}, 4, v0
    """)
    def oload(kappa):
        a(f"s_add_u32 s59, s58, {(kappa//4)*4096}")
        a(f"buffer_load_dwordx4 {vr(OF+4*(kappa%PD))}, v{VO}, s[24:27], s59 offen offset:{(kappa%4)*1024}")
        vm.issue(("o", kappa))

    for kappa in range(PD):
        oload(kappa)
    a(f"""
    v_and_b32 v1, 31, v0
    v_lshrrev_b32 v2, 5, v0
    s_lshl_b32 s60, s57, 5
    v_add_u32 v3, s60, v1
    v_lshlrev_b32 v4, 11, v3
    v_lshlrev_b32 v5, 4, v2
    v_add_u32 v4, v4, v5
    s_lshl_b32 s61, s55, 7
    v_add_u32 v{VX}, s61, v4
    v_lshlrev_b32 v3, 2, v3
    s_mov_b32 s62, {WS_G:#x}
    """)
    for i in range(4):
        a(f"buffer_load_dwordx4 {vr(XR+4*i)}, v{VX}, s[8:11], 0 offen offset:{32*i}")
        vm.issue("x")
    a(f"buffer_load_dword v{GR}, v3, s[24:27], s62 offen")
    vm.issue("x")
    a(f"""
    v_bfe_u32 v3, v0, 2, 2
    v_lshlrev_b32 v4, 2, v2
    v_add_u32 v4, v4, v3
    v_lshlrev_b32 v4, 7, v4
    v_bfe_u32 v5, v0, 4, 1
    v_lshlrev_b32 v5, 5, v5
    v_add_u32 v4, v4, v5
    v_and_b32 v5, 3, v0
    v_lshlrev_b32 v5, 3, v5
    v_add_u32 v4, v4, v5
    v_lshrrev_b32 v3, 1, v3
    v_lshlrev_b32 v3, 6, v3
    v_add_u32 v{WA}, v4, v3
    v_xor_b32 v3, 64, v3
    v_add_u32 v{WA+1}, v4, v3
    v_add_u32 v{WA+2}, 65536, v{WA}
    v_add_u32 v{WA+3}, 65536, v{WA+1}
    """)

    def wreads(kappa, s):
        base = WA + 2 * (kappa // 32)
        off = (kappa % 32) * 2048
        r = []
        for nt in range(2):
            r.append(f"ds_read_b64_tr_b16 {vr(WF[s]+4*nt,2)}, v{base+nt} offset:{off}")
            r.append(f"ds_read_b64_tr_b16 {vr(WF[s]+4*nt+2,2)}, v{base+nt} offset:{off+1024}")
        return r

    per = 64 // NG
    a("s_barrier")
    for x in wreads(0, 0):
        a(x)
    for kappa in range(64):
        s = kappa & 1
        of = OF + 4 * (kappa % PD)
        vm.wait(("o", kappa))
        boundary = (kappa + 1) % per == 0 and kappa < 63
        nxt = wreads(kappa + 1, s ^ 1) if kappa < 63 else []
        if boundary or kappa == 63:
            a("s_waitcnt lgkmcnt(0)")
            if boundary:
                a("s_barrier")
        else:
            a("s_waitcnt lgkmcnt(2)")
        c = "0" if kappa == 0 else vr(ACC[0], 16)
        a(f"v_mfma_f32_32x32x16_bf16 {vr(ACC[0],16)}, {vr(WF[s])}, {vr(of)}, {c}")
        if nxt:
            a(nxt[0]); a(nxt[1])
        if not (boundary or kappa == 63):
            a("s_waitcnt lgkmcnt(2)")
        c = "0" if kappa == 0 else vr(ACC[1], 16)
        a(f"v_mfma_f32_32x32x16_bf16 {vr(ACC[1],16)}, {vr(WF[s]+4)}, {vr(of)}, {c}")
        if nxt:
            a(nxt[2]); a(nxt[3])
        if kappa + PD < 64:
            oload(kappa + PD)
    YF = 32
    a(f"""
    s_barrier
    v_bfe_u32 v40, v{LANE}, 2, 2
    v_lshrrev_b32 v41, 5, v{LANE}
    v_lshlrev_b32 v41, 2, v41
    v_add_u32 v40, v40, v41
    v_lshlrev_b32 v40, 8, v40
    v_bfe_u32 v41, v{LANE}, 4, 1
    v_lshlrev_b32 v41, 5, v41
    v_add_u32 v40, v40, v41
    v_and_b32 v41, 3, v{LANE}
    v_lshlrev_b32 v41, 3, v41
    v_add_u32 v40, v40, v41
    s_lshl_b32 s60, s50, 6
    s_add_u32 s60, s60, {K3_Y}
    v_add_u32 v40, s60, v40
    """)
    YR = 48
    for nt in range(2):
        for q in range(4):
            a(f"ds_read_b64_tr_b16 {vr(YR+8*nt+2*q,2)}, v40 offset:{(32*nt+8*q)*256}")
    if vm.has("x"):
        vm.wait("x")
    for i in range(4):
        a(f"v_permlane32_swap_b32 v{XR+4*i}, v{XR+4*i+2}")
        a(f"v_permlane32_swap_b32 v{XR+4*i+1}, v{XR+4*i+3}")
    a(f"v_sub_f32 v{GR+1}, 1.0, v{GR}")
    a("s_waitcnt lgkmcnt(0)")
    T = 64
    OUT = 80
    for nt in range(2):
        for q in range(4):
            i = 2 * nt + (q >> 1)
            xr = XR + 4 * i + 2 * (q & 1)
            yr = YR + 8 * nt + 2 * q
            ac = ACC[nt] + 4 * q
            a(f"v_lshlrev_b32 v{T}, 16, v{xr}")
            a(f"v_and_b32 v{T+1}, 0xffff0000, v{xr}")
            a(f"v_lshlrev_b32 v{T+2}, 16, v{xr+1}")
            a(f"v_and_b32 v{T+3}, 0xffff0000, v{xr+1}")
            a(f"v_lshlrev_b32 v{T+4}, 16, v{yr}")
            a(f"v_and_b32 v{T+5}, 0xffff0000, v{yr}")
            a(f"v_lshlrev_b32 v{T+6}, 16, v{yr+1}")
            a(f"v_and_b32 v{T+7}, 0xffff0000, v{yr+1}")
            for e in range(4):
                a(f"v_mul_f32 v{T+e}, v{T+e}, v{T+4+e}")
            for e in range(4):
                a(f"v_mul_f32 v{T+e}, v{T+e}, v{GR+1}")
            for e in range(4):
                a(f"v_fmac_f32 v{T+e}, v{ac+e}, v{GR}")
            o = OUT + 4 * i + 2 * (q & 1)
            a(f"v_cvt_pk_bf16_f32 v{o}, v{T}, v{T+1}")
            a(f"v_cvt_pk_bf16_f32 v{o+1}, v{T+2}, v{T+3}")
    a("s_nop 1")
    for i in range(4):
        a(f"v_permlane32_swap_b32 v{OUT+4*i}, v{OUT+4*i+2}")
        a(f"v_permlane32_swap_b32 v{OUT+4*i+1}, v{OUT+4*i+3}")
    for i in range(4):
        a(f"buffer_store_dwordx4 {vr(OUT+4*i)}, v{VX}, s[16:19], 0 offen offset:{32*i}")
    a("s_endpgm")

    a.label("L3_loader")
    vm = VM(a)
    srd(a, 12, 6, 2 << 20)
    a(f"""
    s_sub_u32 s50, s50, 4
    v_lshrrev_b32 v4, 3, v0
    v_and_b32 v5, 7, v0
    v_bfe_u32 v6, v0, 4, 1
    v_lshlrev_b32 v6, 2, v6
    v_xor_b32 v5, v5, v6
    v_lshlrev_b32 v5, 4, v5
    v_lshlrev_b32 v4, 11, v4
    v_add_u32 v1, v4, v5
    v_lshrrev_b32 v4, 4, v0
    v_and_b32 v5, 15, v0
    v_lshlrev_b32 v4, 12, v4
    v_lshlrev_b32 v5, 4, v5
    v_add_u32 v2, v4, v5
    s_lshl_b32 s57, s55, 7
    s_lshl_b32 s60, s55, 18
    s_lshl_b32 s61, s54, 8
    s_add_u32 s60, s60, s61
    s_add_u32 s60, s60, {WS_YT:#x}
    """)
    ppg = 128 // NG // 4
    a(f"s_mul_i32 s58, s50, {ppg*16384}\ns_add_u32 s57, s57, s58\ns_mul_i32 s58, s50, {ppg*1024}")
    for g in range(NG):
        for i in range(ppg):
            p0 = g * (128 // NG) + i
            a(f"s_add_u32 m0, s58, {p0*1024}")
            a(f"s_add_u32 s59, s57, {p0*16384}")
            a("buffer_load_dwordx4 v1, s[12:15], s59 offen lds")
            vm.issue(("w", g))
    a("s_lshl_b32 s58, s50, 12\ns_lshl_b32 s61, s50, 16\ns_add_u32 s60, s60, s61")
    for i in range(4):
        a(f"s_add_u32 m0, s58, {K3_Y + i*1024}")
        a(f"s_add_u32 s59, s60, {i*16384}")
        a("buffer_load_dwordx4 v2, s[24:27], s59 offen lds")
        vm.issue("y")
    for g in range(NG):
        vm.wait(("w", g))
        a("s_barrier")
    vm.wait("y")
    a("s_barrier")
    a.label("L3_end")
    a("s_endpgm")
    return a.text(), kernel_desc(name)


HEADER = """; gated_mix: g * linear_attention(x) + (1 - g) * x * h3_conv(k, v), three launches.
; @launch kernel={n1} grid=(256,1,1) block=(512,1,1) lds={l1}
; @launch kernel=k2_kernel grid=(256,1,1) block=(512,1,1) lds={l2}
; @launch kernel=k3_kernel grid=(256,1,1) block=(512,1,1) lds={l3}
.amdgcn_target "amdgcn-amd-amdhsa--gfx950"
.text
"""


def generate(cfg=None):
    cfg = cfg or {}
    t1, d1 = gen_k1(cfg)
    t2, d2 = gen_k2(cfg)
    t3, d3 = gen_k3(cfg)
    s = HEADER.format(n1=NAME + "_kernel", l1=K1_LDS, l2=K2_LDS, l3=K3_LDS)
    s += t1 + t2 + t3
    s += '.section .rodata,"a"\n.p2align 6\n' + d1 + ".p2align 6\n" + d2 + ".p2align 6\n" + d3
    return s


if __name__ == "__main__":
    cfg = {}
    out = f"cdna_kernels/{NAME}.s"
    for arg in sys.argv[1:]:
        if arg.startswith("-o"):
            out = arg[2:]
        else:
            k, v = arg.split("=")
            cfg[k] = int(v)
    open(out, "w").write(generate(cfg))
    print("wrote", out)
```

```python
import sys

NAME = "gated_mix__linear_attn_block__ssm_conv_h3__prompt"
KNAME = NAME + "_kernel"

WS_O = 0
WS_UT = 4 << 20
WS_YT = 8 << 20
WS_KVP = 12 << 20
WS_ZP = 14 << 20
WS_G = (14 << 20) + (1 << 19)
WS_FL = 15 << 20
WS_SIZE = 32 << 20
WS_TS = 24 << 20

SLOT = 40960
NS = 3
L_U = 122880
U_CH = 4608
COPY = 4160
H_CH = 4 * COPY
L_Y = 131072
L_X = 147456
L_KVX = L_X
L_ZX = L_X + 8192
L_OX = L_X + 8448
L_FLG = L_X + 12544
LDS_BYTES = 163840
F_KVX, F_OX, F_CONV, F_NONCE = 0, 8, 24, 28

LOG2E = 0x3FB8AA3B
EPS6 = 0x358637BD
SPIN_MAX = 200000

P_X, P_WQKV, P_WO, P_K, P_V, P_SK, P_H = 16, 18, 20, 24, 26, 28, 30
P_D, P_GW, P_OUT, P_DBG, P_WS = 32, 34, 36, 38, 40
R_WS = 44
R_A, R_B, R_C, R_D = 48, 52, 56, 60
S_WAVE, S_MT, S_HP, S_ROT, S_NONCE = 64, 65, 66, 67, 68
S_MT3, S_NT3 = 69, 70
LANE = 250

STAMPS = 0


class Asm:
    def __init__(self):
        self.lines = []
        self.nlab = 0

    def __call__(self, s):
        for ln in s.split("\n"):
            ln = ln.strip()
            if ln:
                self.lines.append("  " + ln)

    def label(self, s):
        self.lines.append(s + ":")

    def raw(self, s):
        self.lines.append(s)

    def newlab(self, p):
        self.nlab += 1
        return f"{p}_{self.nlab}"

    def text(self):
        return "\n".join(self.lines) + "\n"


class VM:
    def __init__(self, a):
        self.a = a
        self.q = []

    def issue(self, tag, n=1):
        self.q += [tag] * n

    def wait(self, tag):
        if tag not in self.q:
            return
        idx = max(i for i, t in enumerate(self.q) if t == tag)
        n = len(self.q) - 1 - idx
        self.a(f"s_waitcnt vmcnt({min(n, 63)})")
        self.q = self.q[idx + 1:]

    def drain(self):
        self.a("s_waitcnt vmcnt(0)")
        self.q = []


def vr(b, n=4):
    return f"v[{b}:{b+n-1}]"


def sr(b, n=4):
    return f"s[{b}:{b+n-1}]"


def srd(a, dst, src, size):
    a(f"s_mov_b32 s{dst}, s{src}")
    a(f"s_and_b32 s{dst+1}, s{src+1}, 0xffff")
    a(f"s_mov_b32 s{dst+2}, {size:#x}")
    a(f"s_mov_b32 s{dst+3}, 0x20000")


def stamp(a, idx):
    if STAMPS:
        a("s_memtime s[100:101]" if STAMPS == 2 else "s_memrealtime s[100:101]")
        a("s_waitcnt lgkmcnt(0)")
        a(f"s_mov_b32 s{84+idx}, s100")


def stamp_flush(a):
    if STAMPS:
        a("s_mov_b64 exec, 1")
        a(f"s_lshl_b32 s98, s2, 3\ns_add_u32 s98, s98, s{S_WAVE}\ns_lshl_b32 s98, s98, 6\ns_add_u32 s98, s98, {WS_TS:#x}")
        for i in range(14):
            a(f"v_mov_b32 v{232+i}, s{84+i}")
        a("v_mov_b32 v231, 0")
        for j in range(4):
            a(f"buffer_store_dwordx4 {vr(232+4*j)}, v231, {sr(R_WS)}, s98 offen offset:{16*j}")


def mfma(d, x, y, c):
    return f"v_mfma_f32_16x16x32_bf16 {vr(d)}, {vr(x)}, {vr(y)}, {c}"


def unpack(a, dst, src, half):
    if half == 0:
        a(f"v_lshlrev_b32 v{dst}, 16, v{src}")
    else:
        a(f"v_and_b32 v{dst}, 0xffff0000, v{src}")


def phi(a, regs, tmp, s_l2e, s_eps):
    n = len(regs)
    for i in range(n):
        a(f"v_mul_f32 v{tmp+i}, s{s_l2e}, v{regs[i]}")
    for i in range(n):
        a(f"v_exp_f32 v{tmp+i}, v{tmp+i} clamp")
    for i in range(n):
        a(f"v_add_f32 v{regs[i]}, 1.0, v{regs[i]}")
    for i in range(n):
        a(f"v_max_f32 v{regs[i]}, v{regs[i]}, v{tmp+i}")
    for i in range(n):
        a(f"v_add_f32 v{regs[i]}, s{s_eps}, v{regs[i]}")


def flag_off(typ, s_group, s_prod, dst, a):
    a(f"s_lshl_b32 s{dst}, s{s_group}, 4")
    a(f"s_add_u32 s{dst}, s{dst}, s{s_prod}")
    a(f"s_lshl_b32 s{dst}, s{dst}, 7")
    a(f"s_add_u32 s{dst}, s{dst}, {WS_FL + typ*32768:#x}")


def signal(a, s_off, idx_bytes, vt):
    a(f"v_mov_b32 v{vt}, s{S_NONCE}")
    a(f"v_mov_b32 v{vt+1}, {idx_bytes}" if isinstance(idx_bytes, int) else f"v_mov_b32 v{vt+1}, s{idx_bytes[0]}")
    a("s_mov_b64 exec, 1")
    a(f"buffer_store_dword v{vt}, v{vt+1}, {sr(R_WS)}, s{s_off} offen sc1")
    a("s_mov_b64 exec, -1")


def poll_lines(a, v_off, s_base, nd, vt, st):
    lab = a.newlab("L_poll")
    done = a.newlab("L_pdone")
    mask = sum(((1 << nd) - 1) << (4 * i) for i in range(16))
    a(f"s_mov_b32 s{st}, {mask & 0xffffffff:#x}")
    a(f"s_mov_b32 s{st+1}, {mask >> 32:#x}")
    a(f"s_mov_b32 s{st+2}, 0")
    a.label(lab)
    a(f"buffer_load_dword v{vt}, v{v_off}, {sr(R_WS)}, s{s_base} offen sc1")
    a("s_waitcnt vmcnt(0)")
    a(f"v_cmp_eq_u32 vcc, s{S_NONCE}, v{vt}")
    a(f"s_add_u32 s{st+2}, s{st+2}, 1")
    a(f"s_and_b64 vcc, vcc, s[{st}:{st+1}]")
    a(f"s_cmp_eq_u64 vcc, s[{st}:{st+1}]")
    a(f"s_cbranch_scc1 {done}")
    a(f"s_cmp_lt_u32 s{st+2}, {SPIN_MAX}")
    a(f"s_cbranch_scc1 {lab}")
    a.label(done)


def lds_poll(a, v_addr, off, target, vt, st):
    lab = a.newlab("L_lp")
    done = a.newlab("L_lpd")
    a(f"s_mov_b32 s{st+1}, 0")
    a.label(lab)
    a(f"ds_read_b32 v{vt}, v{v_addr} offset:{off}")
    a("s_waitcnt lgkmcnt(0)")
    a(f"v_readfirstlane_b32 s{st}, v{vt}")
    a(f"s_add_u32 s{st+1}, s{st+1}, 1")
    a(f"s_cmp_ge_u32 s{st}, {target}")
    a(f"s_cbranch_scc1 {done}")
    a(f"s_cmp_lt_u32 s{st+1}, {SPIN_MAX*16}")
    a(f"s_cbranch_scc1 {lab}")
    a.label(done)


def gen_prologue(a, cfg):
    a(f"""
    s_cmp_ge_u32 s2, 256
    s_cbranch_scc1 L_end
    s_load_dwordx16 s[16:31], s[0:1], 0
    s_load_dwordx8 s[32:39], s[0:1], 64
    s_load_dwordx2 s[40:41], s[0:1], 96
    v_lshrrev_b32 v1, 6, v0
    v_and_b32 v{LANE}, 63, v0
    s_and_b32 s72, s2, 7
    v_readfirstlane_b32 s{S_WAVE}, v1
    s_lshr_b32 s73, s2, 3
    s_and_b32 s{S_MT}, s72, 1
    s_lshl_b32 s{S_MT}, s{S_MT}, 3
    s_and_b32 s74, s73, 7
    s_add_u32 s{S_MT}, s{S_MT}, s74
    s_lshr_b32 s{S_HP}, s72, 1
    s_lshl_b32 s{S_HP}, s{S_HP}, 2
    s_lshr_b32 s74, s73, 3
    s_add_u32 s{S_HP}, s{S_HP}, s74
    s_and_b32 s{S_MT3}, s72, 3
    s_lshl_b32 s{S_MT3}, s{S_MT3}, 2
    s_and_b32 s74, s73, 3
    s_add_u32 s{S_MT3}, s{S_MT3}, s74
    s_lshr_b32 s{S_NT3}, s72, 2
    s_lshl_b32 s{S_NT3}, s{S_NT3}, 3
    s_lshr_b32 s74, s73, 2
    s_add_u32 s{S_NT3}, s{S_NT3}, s74
    """)
    rot = cfg.get("rot", 2)
    if rot == 0:
        a(f"s_mov_b32 s{S_ROT}, 0")
    elif rot == 1:
        a(f"s_lshl_b32 s{S_ROT}, s72, 1")
    else:
        a(f"s_add_u32 s{S_ROT}, s{S_MT}, s{S_HP}\ns_and_b32 s{S_ROT}, s{S_ROT}, 15")
    if STAMPS:
        for i in range(14):
            a(f"s_mov_b32 s{84+i}, 0")
    a("s_waitcnt lgkmcnt(0)")
    srd(a, R_WS, P_WS, WS_SIZE)
    stamp(a, 0)
    a(f"""
    s_cmp_lt_u32 s{S_WAVE}, 4
    s_cbranch_scc1 L_compute
    s_cmp_ge_u32 s{S_WAVE}, 6
    s_cbranch_scc1 L_prepass
    """)


def gen_loader(a, cfg):
    srd(a, R_A, P_X, 4 << 20)
    srd(a, R_B, P_WQKV, 6 << 20)
    XG, WG = 1, 3
    a(f"""
    s_sub_u32 s71, s{S_WAVE}, 4
    v_lshrrev_b32 v5, 3, v{LANE}
    v_and_b32 v6, 7, v{LANE}
    v_lshrrev_b32 v7, 4, v{LANE}
    v_xor_b32 v8, v6, v7
    v_lshlrev_b32 v8, 4, v8
    v_lshlrev_b32 v9, 11, v5
    v_add_u32 v{XG}, v8, v9
    v_xor_b32 v{XG+1}, 64, v{XG}
    v_and_b32 v7, 1, v7
    v_lshlrev_b32 v7, 1, v7
    v_xor_b32 v8, v6, v7
    v_lshlrev_b32 v8, 4, v8
    v_mul_u32_u24 v9, 6144, v5
    v_add_u32 v{WG}, v8, v9
    v_xor_b32 v{WG+1}, 64, v{WG}
    s_lshl_b32 s72, s{S_MT}, 18
    s_lshl_b32 s73, s71, 17
    s_add_u32 s72, s72, s73
    s_lshl_b32 s73, s71, 13
    s_lshl_b32 s74, s71, 12
    s_add_u32 s74, s74, 16384
    s_lshl_b32 s75, s{S_HP}, 7
    s_mul_i32 s76, s71, 196608
    s_add_u32 s75, s75, s76
    """)
    first_slot = (0 + 2) % NS

    def issue():
        a(f"""
        s_add_u32 s78, s{S_ROT}, s76
        s_and_b32 s78, s78, 15
        s_lshl_b32 s79, s78, 7
        s_add_u32 s79, s79, s72
        s_mul_i32 s80, s78, 393216
        s_add_u32 s80, s80, s75
        s_add_u32 s81, s77, s73
        s_add_u32 s82, s77, s74
        """)
        for i in range(8):
            a(f"s_add_u32 m0, s81, {i*1024}")
            a(f"s_add_u32 s83, s79, {i*16384}")
            a(f"buffer_load_dwordx4 v{XG + (i & 1)}, {sr(R_A)}, s83 offen lds")
        for seg in range(3):
            for i in range(4):
                a(f"s_add_u32 m0, s82, {seg*8192 + i*1024}")
                a(f"s_add_u32 s83, s80, {seg*2048 + i*49152}")
                a(f"buffer_load_dwordx4 v{WG + (i & 1)}, {sr(R_B)}, s83 offen lds")
        a(f"""
        s_add_u32 s76, s76, 1
        s_add_u32 s77, s77, {SLOT}
        s_cmp_eq_u32 s77, {NS*SLOT}
        s_cselect_b32 s77, 0, s77
        """)

    a(f"s_mov_b32 s76, 0\ns_mov_b32 s77, {first_slot*SLOT}")
    stamp(a, 1)
    a.label("L_ld_pro")
    issue()
    a("s_cmp_lt_u32 s76, 2\ns_cbranch_scc1 L_ld_pro")
    a.label("L_ld_loop")
    a("s_waitcnt vmcnt(20)\ns_barrier")
    issue()
    a("s_cmp_lt_u32 s76, 16\ns_cbranch_scc1 L_ld_loop")
    a("s_waitcnt vmcnt(20)\ns_barrier")
    a("s_waitcnt vmcnt(0)\ns_barrier")
    stamp(a, 2)
    a("s_branch L_conv")


def gen_prepass(a, cfg):
    a.label("L_prepass")
    vm = VM(a)
    srd(a, R_A, P_K, 4 << 20)
    srd(a, R_B, P_V, 4 << 20)
    srd(a, R_C, P_X, 4 << 20)
    KR, VR, WT, GX, GW = 16, 60, 92, 108, 140
    KA, KB, SKA, GA, UA = 2, 3, 4, 5, 6
    T = 152
    a(f"s_sub_u32 s71, s{S_WAVE}, 6")
    a(f"""
    v_mov_b32 v8, 0
    v_mov_b32 v9, 0
    v_mov_b32 v10, 0
    v_mov_b32 v11, 0
    v_mov_b32 v12, {L_FLG}
    ds_write_b128 v12, v[8:11]
    ds_write_b128 v12, v[8:11] offset:16
    """)
    srd(a, R_D, P_DBG, 256)
    a(f"""
    s_cmp_lg_u32 s2, 0
    s_cbranch_scc1 L_notag
    s_cmp_lg_u32 s71, 0
    s_cbranch_scc1 L_notag
    s_memrealtime s[72:73]
    s_waitcnt lgkmcnt(0)
    s_or_b32 s72, s72, 1
    v_mov_b32 v13, s72
    v_mov_b32 v14, 0
    s_mov_b64 exec, 1
    buffer_store_dword v13, v14, {sr(R_D)}, 0 offen sc1
    s_mov_b64 exec, -1
    """)
    a.label("L_notag")
    a(f"""
    v_and_b32 v8, 7, v{LANE}
    v_lshrrev_b32 v9, 3, v{LANE}
    s_lshl_b32 s72, s71, 3
    s_lshl_b32 s73, s{S_MT}, 4
    s_add_u32 s72, s72, s73
    v_add_u32 v9, s72, v9
    s_lshl_b32 s73, s{S_HP}, 6
    v_lshlrev_b32 v10, 3, v8
    v_add_u32 v10, s73, v10
    v_lshlrev_b32 v11, 14, v9
    v_lshlrev_b32 v12, 1, v10
    v_add_u32 v{KB}, v11, v12
    v_subrev_u32 v{KA}, 6144, v{KB}
    v_lshlrev_b32 v{SKA}, 3, v10
    v_lshlrev_b32 v{GA}, 5, v{LANE}
    v_lshlrev_b32 v11, 12, v10
    v_lshlrev_b32 v12, 4, v9
    v_add_u32 v{UA}, v11, v12
    s_mov_b32 s74, 4096
    s_mov_b32 s75, 8192
    s_mov_b32 s76, 12288
    s_lshl_b32 s77, s{S_MT}, 7
    s_lshl_b32 s78, s{S_HP}, 3
    s_add_u32 s77, s77, s78
    s_lshl_b32 s78, s71, 2
    s_add_u32 s77, s77, s78
    s_lshl_b32 s78, s77, 11
    s_waitcnt lgkmcnt(0)
    s_barrier
    """)
    soff = ["0", "s74", "s75", "s76"]

    def rowload(dst, va, srdn, i):
        a(f"buffer_load_dwordx4 {vr(dst)}, v{va}, {sr(srdn)}, {soff[i//2]} offen offset:{(i%2)*2048}")
        vm.issue("pre")

    for i in range(3):
        rowload(KR + 4 * i, KA, R_A, i)
    for i in range(8):
        rowload(KR + 12 + 4 * i, KB, R_A, i)
    for i in range(8):
        rowload(VR + 4 * i, KB, R_B, i)
    srd(a, R_A, P_SK, 8192)
    for i in range(4):
        a(f"buffer_load_dwordx4 {vr(WT+4*i)}, v{SKA}, {sr(R_A)}, 0 offen offset:{16*i}")
        vm.issue("pre")
    for r in range(4):
        a(f"s_add_u32 s79, s78, {r*2048}")
        for i in range(2):
            a(f"buffer_load_dwordx4 {vr(GX+8*r+4*i)}, v{GA}, {sr(R_C)}, s79 offen offset:{16*i}")
            vm.issue("gate")
    srd(a, R_B, P_GW, 2048)
    for i in range(2):
        a(f"buffer_load_dwordx4 {vr(GW+4*i)}, v{GA}, {sr(R_B)}, 0 offen offset:{16*i}")
        vm.issue("gate")
    a("s_barrier")

    def channel(j):
        dw, half = j >> 1, j & 1
        W, Kf, Of, P = T, T + 4, T + 16, T + 24
        for tau in range(4):
            unpack(a, W + tau, WT + 2 * j + (tau >> 1), tau & 1)
        for i in range(11):
            unpack(a, Kf + i, KR + 4 * i + dw, half)
        for i in range(8):
            a(f"v_mul_f32 v{Of+i}, v{W+3}, v{Kf+i}")
        for tau in (2, 1, 0):
            for i in range(8):
                a(f"v_fmac_f32 v{Of+i}, v{W+tau}, v{Kf+i+3-tau}")
        for i in range(8):
            unpack(a, Kf + i, VR + 4 * i + dw, half)
        for i in range(8):
            a(f"v_mul_f32 v{Of+i}, v{Of+i}, v{Kf+i}")
        P = P + 4 * (j & 1)
        for m in range(4):
            a(f"v_cvt_pk_bf16_f32 v{P+m}, v{Of+7-2*m}, v{Of+6-2*m}")
        a(f"s_mov_b32 s80, {WS_UT + j*4096:#x}")
        a(f"buffer_store_dwordx4 {vr(P)}, v{UA}, {sr(R_WS)}, s80 offen sc1")
        vm.issue("ut")

    vm.wait("pre")
    for b in range(2, 6):
        a("s_barrier")
        channel(2 * (b - 2))
        channel(2 * (b - 2) + 1)
    a("s_barrier")
    vm.wait("gate")
    Z = T + 32
    for r in range(4):
        a(f"v_mov_b32 v{Z+r}, 0")
    for i in range(8):
        for r in range(4):
            a(f"v_dot2_f32_bf16 v{Z+r}, v{GX+8*r+i}, v{GW+i}, v{Z+r}")
    for ctl in ("row_shr:1 row_mask:0xf", "row_shr:2 row_mask:0xf", "row_shr:4 row_mask:0xf",
                "row_shr:8 row_mask:0xf", "row_bcast:15 row_mask:0xa", "row_bcast:31 row_mask:0xc"):
        a("s_nop 1")
        for r in range(4):
            a(f"v_add_f32_dpp v{Z+r}, v{Z+r}, v{Z+r} {ctl} bank_mask:0xf")
    a(f"s_mov_b32 s80, {LOG2E ^ 0x80000000:#x}")
    for r in range(4):
        a(f"v_mul_f32 v{Z+r}, s80, v{Z+r}")
    for r in range(4):
        a(f"v_exp_f32 v{Z+r}, v{Z+r}")
    a("s_nop 0")
    for r in range(4):
        a(f"v_add_f32 v{Z+r}, 1.0, v{Z+r}")
    for r in range(4):
        a(f"v_rcp_f32 v{Z+r}, v{Z+r}")
    a(f"""
    s_lshl_b32 s80, s77, 2
    s_add_u32 s80, s80, {WS_G:#x}
    v_mov_b32 v{Z+4}, 0
    v_cmp_eq_u32 vcc, 63, v{LANE}
    s_and_saveexec_b64 s[82:83], vcc
    buffer_store_dwordx4 {vr(Z)}, v{Z+4}, {sr(R_WS)}, s80 offen sc1
    s_mov_b64 exec, s[82:83]
    """)
    vm.issue("g")
    a("s_barrier")
    lab = a.newlab("L_tag")
    a("v_mov_b32 v8, 0\ns_mov_b32 s80, 0")
    a.label(lab)
    a(f"""
    buffer_load_dword v9, v8, {sr(R_D)}, 0 offen sc1
    s_waitcnt vmcnt(0)
    v_readfirstlane_b32 s{S_NONCE}, v9
    s_add_u32 s80, s80, 1
    s_cmp_lg_u32 s{S_NONCE}, 0
    s_cbranch_scc1 L_tagok
    s_cmp_lt_u32 s80, {SPIN_MAX}
    s_cbranch_scc1 {lab}
    """)
    a.label("L_tagok")
    vm.q = []
    flag_off(0, S_HP, S_MT, 80, a)
    a("s_lshl_b32 s81, s71, 2")
    signal(a, 80, ("81", ), 8)
    a(f"""
    v_mov_b32 v8, s{S_NONCE}
    v_mov_b32 v9, {L_FLG}
    ds_write_b32 v9, v8 offset:{F_NONCE}
    s_waitcnt lgkmcnt(0)
    s_barrier
    """)
    for b in (9, 10):
        a("s_barrier")
    a("s_cmp_eq_u32 s71, 0\ns_cbranch_scc1 L_pp_skip")
    a(f"""
    v_lshrrev_b32 v8, 2, v{LANE}
    v_lshlrev_b32 v8, 7, v8
    v_and_b32 v9, 3, v{LANE}
    v_lshlrev_b32 v9, 2, v9
    v_add_u32 v8, v8, v9
    s_lshr_b32 s80, s2, 4
    s_lshl_b32 s80, s80, 11
    s_add_u32 s80, s80, {WS_FL:#x}
    """)
    poll_lines(a, 8, 80, 2, 10, 72)
    a(f"""
    v_lshrrev_b32 v8, 2, v{LANE}
    v_lshlrev_b32 v8, 11, v8
    v_add_u32 v8, v8, v9
    s_lshl_b32 s80, s{S_MT3}, 7
    s_add_u32 s80, s80, {WS_FL:#x}
    """)
    poll_lines(a, 8, 80, 2, 10, 72)
    a.label("L_pp_skip")
    a("s_barrier")
    a(f"""
    v_lshlrev_b32 v8, 4, v{LANE}
    s_lshl_b32 s80, s2, 2
    s_lshl_b32 s81, s71, 1
    s_add_u32 s80, s80, s81
    s_lshl_b32 s80, s80, 12
    s_add_u32 s80, s80, {WS_UT:#x}
    s_add_u32 s81, s80, 4096
    """)
    for c in range(2):
        for j in range(4):
            a(f"buffer_load_dwordx4 {vr(16+16*c+4*j)}, v8, {sr(R_WS)}, s{80+c} offen offset:{j*1024} sc1")
    a(f"""
    s_mul_i32 s82, s71, {2*U_CH}
    s_add_u32 s82, s82, {L_U}
    v_add_u32 v9, s82, v8
    v_and_b32 v10, 31, v{LANE}
    v_lshlrev_b32 v10, 4, v10
    v_add_u32 v10, s82, v10
    v_mov_b32 v12, 0
    v_mov_b32 v13, 0
    v_mov_b32 v14, 0
    v_mov_b32 v15, 0
    ds_write_b128 v10, v[12:15]
    ds_write_b128 v10, v[12:15] offset:{U_CH}
    s_barrier
    s_waitcnt vmcnt(0)
    """)
    for c in range(2):
        for j in range(4):
            a(f"ds_write_b128 v9, {vr(16+16*c+4*j)} offset:{c*U_CH + 512 + j*1024}")
    a("s_waitcnt lgkmcnt(0)")
    for b in (13, 14, 15):
        a("s_barrier")
    stamp(a, 2)


def gen_conv(a, cfg):
    a.label("L_conv")
    vm = VM(a)
    srd(a, R_A, P_H, 4 << 20)
    srd(a, R_B, P_D, 2048)
    ACC, AP = 0, 160
    AF, BF = [32, 96], [64, 128]
    VA, VB, VY = 164, 165, 166
    a(f"""
    s_sub_u32 s71, s{S_WAVE}, 4
    s_lshl_b32 s72, s2, 2
    s_add_u32 s72, s72, s71
    s_mul_i32 s73, s71, {H_CH}
    s_lshl_b32 s74, s72, 12
    v_lshlrev_b32 v1, 4, v{LANE}
    v_lshrrev_b32 v2, 4, v{LANE}
    v_and_b32 v3, 15, v{LANE}
    v_add_u32 v4, v2, v3
    v_subrev_u32 v4, 15, v4
    v_max_i32 v5, 0, v4
    v_lshlrev_b32 v5, 1, v5
    buffer_load_ushort v6, v5, {sr(R_A)}, s74 offen
    s_lshl_b32 s75, s72, 1
    v_mov_b32 v7, 0
    buffer_load_ushort v8, v7, {sr(R_B)}, s75 offen
    """)
    vm.issue("fix", 2)
    for cc in range(4):
        for j in range(4):
            a(f"s_add_u32 m0, s73, {cc*COPY + 32 + j*1024}")
            a(f"s_add_u32 s75, s74, {32 + j*1024 + 2*(cc-15)}")
            a(f"buffer_load_dwordx4 v1, {sr(R_A)}, s75 offen lds")
            vm.issue("h")
    a("s_barrier")
    a(f"""
    v_mov_b32 v10, 0
    v_mul_u32_u24 v14, {COPY}, v2
    v_lshlrev_b32 v15, 1, v3
    v_add_u32 v14, v14, v15
    v_add_u32 v14, s73, v14
    v_and_b32 v16, 3, v3
    v_mul_u32_u24 v16, {COPY}, v16
    v_lshlrev_b32 v17, 4, v2
    v_add_u32 v16, v16, v17
    v_lshrrev_b32 v17, 2, v3
    v_lshlrev_b32 v17, 3, v17
    v_add_u32 v16, v16, v17
    v_add_u32 v{VA}, s73, v16
    v_lshlrev_b32 v16, 1, v3
    v_add_u32 v16, 1, v16
    v_sub_u32 v16, v16, v2
    v_lshlrev_b32 v16, 4, v16
    s_mul_i32 s75, s71, {U_CH}
    s_add_u32 s75, s75, {L_U + 64}
    v_add_u32 v{VB}, s75, v16
    v_lshlrev_b32 v16, 5, v3
    v_lshlrev_b32 v17, 3, v2
    v_add_u32 v{VY}, v16, v17
    v_mov_b32 v18, {L_FLG}
    ds_read_b32 v19, v18 offset:{F_NONCE}
    """)
    vm.wait("fix")
    a(f"""
    v_cmp_gt_i32 vcc, 0, v4
    v_sub_u32 v16, 15, v3
    v_lshrrev_b32 v17, 3, v16
    v_cndmask_b32 v6, v6, v10, vcc
    v_and_b32 v18, 1, v16
    v_lshlrev_b32 v18, 4, v18
    v_lshlrev_b32 v8, v18, v8
    v_cmp_eq_u32 vcc, v17, v2
    s_waitcnt lgkmcnt(0)
    v_readfirstlane_b32 s{S_NONCE}, v19
    v_bfe_u32 v19, v16, 1, 2
    v_cndmask_b32 v8, v10, v8, vcc
    """)
    for m in range(4):
        a(f"v_cmp_eq_u32 vcc, {m}, v19")
        a("s_nop 1")
        a(f"v_cndmask_b32 v{AP+m}, v10, v8, vcc")
    a("ds_write_b16 v14, v6")
    vm.wait("h")
    a("s_waitcnt lgkmcnt(0)")
    stamp(a, 3)

    def rd(rho, s):
        r = []
        for i in range(8):
            r.append(f"ds_read_b128 {vr(BF[s]+4*i)}, v{VB} offset:{512*i + 64*(7-rho)}")
            n = 8 * i + rho
            r.append(f"ds_read_b64 {vr(AF[s]+4*i,2)}, v{VA} offset:{64*n}")
            r.append(f"ds_read_b64 {vr(AF[s]+4*i+2,2)}, v{VA} offset:{64*n+8}")
        return r

    def mm(rho, s):
        m = []
        for T in range(8):
            for i in range(T + 1):
                c = "0" if (rho == 0 and i == 0) else vr(ACC + 4 * T)
                m.append(mfma(ACC + 4 * T, AF[s] + 4 * i, BF[s] + 4 * (T - i), c))
            if rho == 0:
                m.append(mfma(ACC + 4 * T, AP, BF[s] + 4 * T, vr(ACC + 4 * T)))
        return m

    for x in rd(0, 0):
        a(x)
    for rho in range(8):
        s = rho & 1
        a("s_waitcnt lgkmcnt(0)")
        nxt = rd(rho + 1, s ^ 1) if rho < 7 else []
        k = 0
        for x in mm(rho, s):
            a(x)
            if k < len(nxt):
                a(nxt[k]); k += 1
        assert k == len(nxt)
    a("s_nop 7")
    stamp(a, 4)
    a(f"s_add_u32 s75, s74, {WS_YT:#x}")
    for T in range(8):
        a(f"v_cvt_pk_bf16_f32 v{32+2*T}, v{ACC+4*T}, v{ACC+4*T+1}")
        a(f"v_cvt_pk_bf16_f32 v{33+2*T}, v{ACC+4*T+2}, v{ACC+4*T+3}")
    for T in range(8):
        a(f"buffer_store_dwordx2 {vr(32+2*T,2)}, v{VY}, {sr(R_WS)}, s75 offen offset:{512*T} sc1")
    a(f"""
    v_mov_b32 v2, {L_FLG}
    v_mov_b32 v3, 1
    s_mov_b64 exec, 1
    ds_add_u32 v2, v3 offset:{F_CONV}
    s_mov_b64 exec, -1
    s_waitcnt vmcnt(0)
    s_lshr_b32 s76, s2, 4
    s_and_b32 s77, s2, 15
    """)
    flag_off(3, 76, 77, 78, a)
    a("s_lshl_b32 s79, s71, 2")
    signal(a, 78, ("79", ), 4)
    lds_poll(a, 2, F_CONV, 4, 4, 76)
    stamp(a, 5)
    a("s_cmp_ge_u32 s71, 2\ns_cbranch_scc1 L_yload")

    NG = 8
    vm = VM(a)
    vm.issue("other", 1)
    srd(a, R_A, P_WO, 2 << 20)
    a(f"""
    v_lshrrev_b32 v4, 3, v{LANE}
    v_and_b32 v5, 7, v{LANE}
    v_bfe_u32 v6, v{LANE}, 4, 2
    v_lshlrev_b32 v6, 1, v6
    v_xor_b32 v5, v5, v6
    v_lshlrev_b32 v5, 4, v5
    v_lshlrev_b32 v4, 11, v4
    v_add_u32 v1, v4, v5
    s_lshl_b32 s72, s{S_NT3}, 7
    s_lshl_b32 s73, s71, 17
    s_add_u32 s72, s72, s73
    s_lshl_b32 s73, s71, 13
    """)
    for g in range(NG):
        for i in range(8):
            p0 = g * 16 + i
            a(f"s_add_u32 m0, s73, {p0*1024}")
            a(f"s_add_u32 s74, s72, {p0*16384}")
            a(f"buffer_load_dwordx4 v1, {sr(R_A)}, s74 offen lds")
            vm.issue(("w", g))
    stamp(a, 6)
    for g in range(NG):
        vm.wait(("w", g))
        a("s_barrier")
    a("s_barrier")
    stamp(a, 7)
    stamp_flush(a)
    a("s_endpgm")

    a.label("L_yload")
    a(f"""
    v_lshrrev_b32 v8, 2, v{LANE}
    v_lshlrev_b32 v8, 7, v8
    v_and_b32 v9, 3, v{LANE}
    v_lshlrev_b32 v9, 2, v9
    v_add_u32 v8, v8, v9
    s_lshl_b32 s80, s{S_NT3}, 11
    s_add_u32 s80, s80, {WS_FL + 3*32768:#x}
    """)
    poll_lines(a, 8, 80, 4, 10, 72)
    a(f"""
    s_sub_u32 s71, s71, 2
    v_lshrrev_b32 v4, 4, v{LANE}
    v_and_b32 v5, 15, v{LANE}
    v_lshlrev_b32 v6, 12, v4
    v_lshlrev_b32 v5, 4, v5
    v_add_u32 v6, v6, v5
    v_lshlrev_b32 v7, 8, v4
    v_add_u32 v7, v7, v5
    s_lshl_b32 s72, s{S_NT3}, 18
    s_lshl_b32 s73, s{S_MT3}, 8
    s_add_u32 s72, s72, s73
    s_lshl_b32 s73, s71, 17
    s_add_u32 s72, s72, s73
    s_add_u32 s72, s72, {WS_YT:#x}
    s_lshl_b32 s73, s71, 13
    s_add_u32 s73, s73, {L_Y}
    v_add_u32 v7, s73, v7
    """)
    for i in range(8):
        a(f"s_add_u32 s74, s72, {i*16384}")
        a(f"buffer_load_dwordx4 {vr(16+4*i)}, v6, {sr(R_WS)}, s74 offen sc1")
    a("s_waitcnt vmcnt(0)")
    for i in range(8):
        a(f"ds_write_b128 v7, {vr(16+4*i)} offset:{i*1024}")
    a("s_waitcnt lgkmcnt(0)")
    stamp(a, 6)
    for g in range(NG + 1):
        a("s_barrier")
    stamp(a, 7)
    stamp_flush(a)
    a("s_endpgm")


def gen_compute(a, cfg):
    a.label("L_compute")
    Q = lambda dt, rt: 0 + 4 * (4 * dt + rt)
    K = lambda rt, dt: 32 + 4 * (2 * rt + dt)
    V = lambda rt, et: 64 + 4 * (2 * rt + et)
    FS = [96, 136]
    AB, AC = 176, 180
    a(f"""
    s_and_b32 s71, s{S_WAVE}, 1
    s_lshr_b32 s72, s{S_WAVE}, 1
    v_and_b32 v1, 15, v{LANE}
    v_lshrrev_b32 v2, 4, v{LANE}
    v_lshrrev_b32 v3, 1, v1
    v_xor_b32 v3, v3, v2
    v_lshlrev_b32 v3, 4, v3
    s_lshl_b32 s73, s72, 13
    v_lshlrev_b32 v4, 7, v1
    v_add_u32 v4, s73, v4
    v_add_u32 v{AB}, v4, v3
    v_xor_b32 v{AB+1}, 64, v{AB}
    v_bfe_u32 v3, v{LANE}, 2, 2
    v_lshlrev_b32 v4, 3, v2
    v_add_u32 v4, v4, v3
    v_lshlrev_b32 v4, 7, v4
    v_lshrrev_b32 v3, 1, v3
    v_and_b32 v5, 1, v2
    v_lshlrev_b32 v5, 1, v5
    v_or_b32 v3, v3, v5
    v_lshlrev_b32 v3, 1, v3
    v_bfe_u32 v5, v{LANE}, 1, 1
    s_lshl_b32 s73, s71, 2
    v_or_b32 v5, s73, v5
    v_xor_b32 v3, v3, v5
    v_lshlrev_b32 v3, 4, v3
    v_add_u32 v4, v4, v3
    v_and_b32 v3, 1, v{LANE}
    v_lshlrev_b32 v3, 3, v3
    v_add_u32 v4, v4, v3
    v_add_u32 v{AB+2}, 16384, v4
    v_xor_b32 v{AB+3}, 32, v{AB+2}
    s_mov_b32 s74, {2*SLOT}
    """)
    for i in range(4):
        a(f"v_add_u32 v{AC+i}, s74, v{AB+i}")
    for r in range(96):
        a(f"v_mov_b32 v{r}, 0")

    def reads(kk, fs):
        X = lambda rt: fs + 4 * rt
        W = lambda seg, ct: fs + 16 + 8 * seg + 4 * ct
        r = []
        for seg in range(3):
            for ct in range(2):
                for t in range(2):
                    r.append(f"ds_read_b64_tr_b16 {vr(W(seg,ct)+2*t,2)}, v{AC+2+ct} offset:{seg*8192+kk*4096+t*512}")
            if seg == 0:
                for rt in range(4):
                    r.append(f"ds_read_b128 {vr(X(rt))}, v{AC+kk} offset:{rt*2048}")
        return r

    def mfmas(fs):
        X = lambda rt: fs + 4 * rt
        W = lambda seg, ct: fs + 16 + 8 * seg + 4 * ct
        m = []
        for rt in range(4):
            for dt in range(2):
                m.append(mfma(Q(dt, rt), W(0, dt), X(rt), vr(Q(dt, rt))))
        for rt in range(4):
            for dt in range(2):
                m.append(mfma(K(rt, dt), X(rt), W(1, dt), vr(K(rt, dt))))
        for rt in range(4):
            for et in range(2):
                m.append(mfma(V(rt, et), X(rt), W(2, et), vr(V(rt, et))))
        return m

    stamp(a, 1)
    a("s_barrier")
    stamp(a, 2)
    for r in reads(0, FS[0]):
        a(r)
    a("s_mov_b32 s75, 0")
    a.label("L_gemm1")
    m = mfmas(FS[0]); rd = reads(1, FS[1])
    a("s_waitcnt lgkmcnt(0)")
    for i, x in enumerate(m):
        a(x)
        if i < len(rd):
            a(rd[i])
    m = mfmas(FS[1]); rd = reads(0, FS[0])
    a("s_waitcnt lgkmcnt(0)")
    a(m[0])
    a(f"s_add_u32 s74, s74, {SLOT}\ns_cmp_eq_u32 s74, {NS*SLOT}\ns_cselect_b32 s74, 0, s74")
    a(m[1])
    a("s_barrier")
    for i in range(4):
        a(f"v_add_u32 v{AC+i}, s74, v{AB+i}")
    a(m[2])
    k = 0
    for x in m[3:]:
        a(x)
        if k < len(rd):
            a(rd[k]); k += 1
    assert k == len(rd)
    a("s_add_u32 s75, s75, 1\ns_cmp_lt_u32 s75, 16\ns_cbranch_scc1 L_gemm1")
    stamp(a, 3)

    TMP = 96
    PK = lambda p, dt: 128 + 4 * (2 * p + dt)
    PV = lambda p, et: 144 + 4 * (2 * p + et)
    ONES = 160
    KV = lambda dt, et: 164 + 4 * (2 * dt + et)
    ZZ = lambda dt: 180 + 4 * dt
    VL = 224
    VF = 230
    S_L2E, S_EPS = 76, 77
    a(f"""
    s_mov_b32 s{S_L2E}, {LOG2E:#x}
    s_mov_b32 s{S_EPS}, {EPS6:#x}
    v_lshlrev_b32 v{VL}, 4, v{LANE}
    v_mov_b32 v{VF}, {L_FLG}
    v_mov_b32 v{ONES}, 0x3f803f80
    v_mov_b32 v{ONES+1}, 0x3f803f80
    v_mov_b32 v{ONES+2}, 0x3f803f80
    v_mov_b32 v{ONES+3}, 0x3f803f80
    s_waitcnt lgkmcnt(0)
    ds_read_b32 v{VF+1}, v{VF} offset:{F_NONCE}
    s_nop 3
    """)
    phi(a, [K(rt, dt) + e for rt in range(4) for dt in range(2) for e in range(4)], TMP, S_L2E, S_EPS)
    for p in range(2):
        for dt in range(2):
            for hlf in range(2):
                src = K(2 * p + hlf, dt)
                a(f"v_cvt_pk_bf16_f32 v{PK(p,dt)+2*hlf}, v{src}, v{src+1}")
                a(f"v_cvt_pk_bf16_f32 v{PK(p,dt)+2*hlf+1}, v{src+2}, v{src+3}")
        for et in range(2):
            for hlf in range(2):
                src = V(2 * p + hlf, et)
                a(f"v_cvt_pk_bf16_f32 v{PV(p,et)+2*hlf}, v{src}, v{src+1}")
                a(f"v_cvt_pk_bf16_f32 v{PV(p,et)+2*hlf+1}, v{src+2}, v{src+3}")
    a(f"s_waitcnt lgkmcnt(0)\nv_readfirstlane_b32 s{S_NONCE}, v{VF+1}")
    for p in range(2):
        for dt in range(2):
            for et in range(2):
                a(mfma(KV(dt, et), PK(p, dt), PV(p, et), "0" if p == 0 else vr(KV(dt, et))))
            a(mfma(ZZ(dt), PK(p, dt), ONES, "0" if p == 0 else vr(ZZ(dt))))
    a(f"""
    s_lshl_b32 s78, s71, 12
    s_add_u32 s78, s78, {L_KVX}
    v_add_u32 v{VL+2}, s78, v{VL}
    v_lshrrev_b32 v{VL+3}, 4, v{LANE}
    v_lshlrev_b32 v{VL+3}, 4, v{VL+3}
    s_lshl_b32 s78, s71, 7
    s_add_u32 s78, s78, {L_ZX}
    v_add_u32 v{VL+4}, s78, v{VL+3}
    s_lshl_b32 s79, s71, 2
    v_add_u32 v{VL+5}, s79, v{VF}
    s_lshl_b32 s80, s{S_HP}, 1
    s_add_u32 s80, s80, s71
    s_cmp_eq_u32 s72, 0
    s_cbranch_scc1 L_kvlower
    """)
    for t in range(4):
        a(f"ds_write_b128 v{VL+2}, {vr(KV(t>>1,t&1))} offset:{t*1024}")
    for dt in range(2):
        a(f"ds_write_b128 v{VL+4}, {vr(ZZ(dt))} offset:{dt*64}")
    a(f"""
    v_mov_b32 v{TMP}, 1
    s_waitcnt lgkmcnt(0)
    ds_write_b32 v{VL+5}, v{TMP} offset:{F_KVX}
    s_branch L_kvdone
    """)
    a.label("L_kvlower")
    lds_poll(a, VL + 5, F_KVX, 1, TMP, 82)
    for t in range(4):
        a(f"ds_read_b128 {vr(TMP+4*t)}, v{VL+2} offset:{t*1024}")
    for dt in range(2):
        a(f"ds_read_b128 {vr(TMP+16+4*dt)}, v{VL+4} offset:{dt*64}")
    a(f"""
    s_lshl_b32 s81, s{S_MT}, 5
    s_add_u32 s81, s81, s80
    s_lshl_b32 s82, s81, 12
    s_add_u32 s82, s82, {WS_KVP:#x}
    s_lshl_b32 s83, s81, 7
    s_add_u32 s83, s83, {WS_ZP:#x}
    s_waitcnt lgkmcnt(0)
    """)
    for t in range(4):
        for e in range(4):
            a(f"v_add_f32 v{KV(t>>1,t&1)+e}, v{KV(t>>1,t&1)+e}, v{TMP+4*t+e}")
    for dt in range(2):
        for e in range(4):
            a(f"v_add_f32 v{ZZ(dt)+e}, v{ZZ(dt)+e}, v{TMP+16+4*dt+e}")
    for t in range(4):
        a(f"buffer_store_dwordx4 {vr(KV(t>>1,t&1))}, v{VL}, {sr(R_WS)}, s82 offen offset:{t*1024} sc1")
    a(f"""
    v_and_b32 v{TMP+24}, 15, v{LANE}
    v_cmp_eq_u32 vcc, 0, v{TMP+24}
    s_and_saveexec_b64 s[78:79], vcc
    """)
    for dt in range(2):
        a(f"buffer_store_dwordx4 {vr(ZZ(dt))}, v{VL+3}, {sr(R_WS)}, s83 offen offset:{dt*64} sc1")
    a("s_mov_b64 exec, s[78:79]\ns_waitcnt vmcnt(0)")
    flag_off(1, S_HP, S_MT, 82, a)
    a("s_lshl_b32 s83, s71, 2")
    signal(a, 82, ("83", ), TMP)
    a.label("L_kvdone")
    stamp(a, 4)

    PQ = lambda rt: 32 + 4 * rt
    phi(a, [Q(dt, rt) + e for dt in range(2) for rt in range(4) for e in range(4)], TMP, S_L2E, S_EPS)
    for rt in range(4):
        for dt in range(2):
            a(f"v_cvt_pk_bf16_f32 v{PQ(rt)+2*dt}, v{Q(dt,rt)}, v{Q(dt,rt)+1}")
            a(f"v_cvt_pk_bf16_f32 v{PQ(rt)+2*dt+1}, v{Q(dt,rt)+2}, v{Q(dt,rt)+3}")
    VP = 232
    a(f"""
    v_lshrrev_b32 v{VP}, 2, v{LANE}
    v_lshlrev_b32 v{VP}, 7, v{VP}
    v_and_b32 v{VP+1}, 3, v{LANE}
    v_lshlrev_b32 v{VP+1}, 2, v{VP+1}
    v_add_u32 v{VP}, v{VP}, v{VP+1}
    s_lshl_b32 s78, s{S_HP}, 11
    s_add_u32 s78, s78, {WS_FL + 32768:#x}
    """)
    poll_lines(a, VP, 78, 2, VP + 2, 80)
    stamp(a, 5)
    PART = 96
    a(f"""
    s_lshl_b32 s78, s{S_HP}, 1
    s_add_u32 s78, s78, s71
    s_lshl_b32 s79, s78, 12
    s_lshl_b32 s80, s72, 10
    s_add_u32 s79, s79, s80
    s_add_u32 s79, s79, {WS_KVP:#x}
    v_and_b32 v48, 15, v{LANE}
    v_lshlrev_b32 v48, 12, v48
    v_lshrrev_b32 v49, 4, v{LANE}
    v_lshlrev_b32 v49, 4, v49
    v_add_u32 v48, v48, v49
    s_lshl_b32 s80, s78, 7
    s_add_u32 s80, s80, {WS_ZP:#x}
    buffer_load_dwordx4 v[52:55], v48, {sr(R_WS)}, s80 offen sc1
    buffer_load_dwordx4 v[56:59], v48, {sr(R_WS)}, s80 offen offset:64 sc1
    """)
    for p in range(16):
        a(f"s_add_u32 s81, s79, {p*32*4096}")
        for dt in range(2):
            a(f"buffer_load_dwordx4 {vr(PART+8*p+4*dt)}, v{VL}, {sr(R_WS)}, s81 offen offset:{dt*2048} sc1")
    a("s_waitcnt vmcnt(32)")
    for ctl in ("row_ror:8", "row_ror:4", "row_ror:2", "row_ror:1"):
        for e in range(8):
            a(f"v_add_f32_dpp v{52+e}, v{52+e}, v{52+e} {ctl} row_mask:0xf bank_mask:0xf")
    ZF = 60
    for i in range(4):
        a(f"v_cvt_pk_bf16_f32 v{ZF+i}, v{52+2*i}, v{52+2*i+1}")
    for p in range(1, 16):
        a(f"s_waitcnt vmcnt({2*(15-p)})")
        for e in range(8):
            a(f"v_add_f32 v{PART+e}, v{PART+e}, v{PART+8*p+e}")
    KF = [64, 68]
    for i in range(4):
        a(f"v_cvt_pk_bf16_f32 v{64+i}, v{PART+2*i}, v{PART+2*i+1}")
    a(f"""
    s_lshl_b32 s78, s71, 11
    s_lshl_b32 s79, s72, 10
    s_add_u32 s78, s78, {L_OX}
    s_add_u32 s80, s78, s79
    s_xor_b32 s79, s79, 1024
    s_add_u32 s81, s78, s79
    v_add_u32 v50, s80, v{VL}
    v_add_u32 v51, s81, v{VL}
    ds_write_b128 v50, v[64:67]
    s_lshl_b32 s78, s{S_WAVE}, 2
    s_xor_b32 s79, s78, 8
    v_add_u32 v48, s78, v{VF}
    v_add_u32 v49, s79, v{VF}
    v_mov_b32 v72, 1
    s_waitcnt lgkmcnt(0)
    ds_write_b32 v48, v72 offset:{F_OX}
    """)
    lds_poll(a, 49, F_OX, 1, 72, 82)
    a("ds_read_b128 v[68:71], v51\ns_waitcnt lgkmcnt(0)")
    a(f"""
    s_cmp_eq_u32 s72, 0
    s_cbranch_scc1 L_noswap
    v_swap_b32 v64, v68
    v_swap_b32 v65, v69
    v_swap_b32 v66, v70
    v_swap_b32 v67, v71
    """)
    a.label("L_noswap")
    NUM = lambda et, rt: 96 + 4 * (4 * et + rt)
    DEN = lambda rt: 128 + 4 * rt
    a("s_nop 1")
    for rt in range(4):
        for et in range(2):
            a(mfma(NUM(et, rt), KF[et], PQ(rt), "0"))
        a(mfma(DEN(rt), ZF, PQ(rt), "0"))
    a(f"""
    s_lshl_b32 s78, s{S_MT}, 3
    s_lshl_b32 s79, s72, 2
    s_add_u32 s78, s78, s79
    s_lshl_b32 s78, s78, 5
    s_lshl_b32 s79, s{S_HP}, 1
    s_add_u32 s78, s78, s79
    s_add_u32 s78, s78, s71
    s_lshl_b32 s78, s78, 10
    s_add_u32 s78, s78, {WS_O:#x}
    s_nop 1
    """)
    for rt in range(4):
        a(f"v_add_f32 v{DEN(rt)}, s{S_EPS}, v{DEN(rt)}")
    for rt in range(4):
        a(f"v_rcp_f32 v{DEN(rt)}, v{DEN(rt)}")
    OF = lambda rt: 144 + 4 * rt
    for rt in range(4):
        for et in range(2):
            for e in range(4):
                a(f"v_mul_f32 v{NUM(et,rt)+e}, v{NUM(et,rt)+e}, v{DEN(rt)}")
        for et in range(2):
            a(f"v_cvt_pk_bf16_f32 v{OF(rt)+2*et}, v{NUM(et,rt)}, v{NUM(et,rt)+1}")
            a(f"v_cvt_pk_bf16_f32 v{OF(rt)+2*et+1}, v{NUM(et,rt)+2}, v{NUM(et,rt)+3}")
        a(f"s_add_u32 s79, s78, {rt*32768}")
        a(f"buffer_store_dwordx4 {vr(OF(rt))}, v{VL}, {sr(R_WS)}, s79 offen sc1")
    a("s_waitcnt vmcnt(0)")
    flag_off(2, S_MT, S_HP, 82, a)
    a(f"s_lshl_b32 s83, s{S_WAVE}, 2")
    signal(a, 82, ("83", ), TMP)
    stamp(a, 6)

    vm = VM(a)
    srd(a, R_A, P_X, 4 << 20)
    srd(a, R_B, P_OUT, 4 << 20)
    ACC = lambda nt, st: 4 * (2 * nt + st)
    OR = 32
    PD = 6
    WF = [80, 96]
    XR = 112
    GR = 128
    WA = 132
    VX = 136
    a(f"""
    v_and_b32 v1, 15, v{LANE}
    v_lshrrev_b32 v2, 4, v{LANE}
    s_lshl_b32 s73, s{S_MT3}, 7
    s_lshl_b32 s74, s{S_WAVE}, 5
    s_add_u32 s73, s73, s74
    v_add_u32 v3, s73, v1
    v_lshlrev_b32 v4, 11, v3
    v_lshlrev_b32 v5, 4, v2
    v_add_u32 v4, v4, v5
    s_lshl_b32 s74, s{S_NT3}, 7
    v_add_u32 v{VX}, s74, v4
    v_add_u32 v{VX+1}, 0x8000, v{VX}
    v_lshlrev_b32 v3, 2, v3
    s_mov_b32 s75, {WS_G:#x}
    """)
    for st in range(2):
        for ntp in range(2):
            a(f"buffer_load_dwordx4 {vr(XR+8*st+4*ntp)}, v{VX+st}, {sr(R_A)}, 0 offen offset:{64*ntp}")
    a(f"buffer_load_dword v{GR}, v3, {sr(R_WS)}, s75 offen sc1")
    a(f"buffer_load_dword v{GR+1}, v3, {sr(R_WS)}, s75 offen offset:64 sc1")
    a(f"""
    v_bfe_u32 v3, v{LANE}, 2, 2
    v_lshlrev_b32 v4, 2, v2
    v_add_u32 v4, v4, v3
    v_lshlrev_b32 v5, 7, v4
    v_lshrrev_b32 v4, 1, v4
    v_and_b32 v4, 3, v4
    v_lshlrev_b32 v4, 1, v4
    v_bfe_u32 v6, v{LANE}, 1, 1
    v_and_b32 v7, 1, v{LANE}
    v_lshlrev_b32 v7, 3, v7
    v_add_u32 v5, v5, v7
    """)
    for nt in range(4):
        a(f"v_or_b32 v7, {2*nt}, v6")
        a("v_xor_b32 v7, v7, v4")
        a("v_lshlrev_b32 v7, 4, v7")
        a(f"v_add_u32 v{WA+nt}, v5, v7")
    a(f"""
    s_lshl_b32 s78, s{S_MT3}, 11
    s_add_u32 s78, s78, {WS_FL + 2*32768:#x}
    """)
    poll_lines(a, VP, 78, 4, VP + 2, 80)
    stamp(a, 7)
    a(f"""
    s_lshl_b32 s73, s{S_MT3}, 3
    s_lshl_b32 s74, s{S_WAVE}, 1
    s_add_u32 s73, s73, s74
    s_lshl_b32 s73, s73, 15
    s_add_u32 s73, s73, {WS_O:#x}
    s_add_u32 s74, s73, 32768
    """)

    def oload(h):
        for st in range(2):
            a(f"s_add_u32 s75, s{73+st}, {(h//4)*4096}")
            a(f"buffer_load_dwordx4 {vr(OR+8*(h%PD)+4*st)}, v{VL}, {sr(R_WS)}, s75 offen offset:{(h%4)*1024} sc1")
            vm.issue(("o", h))

    def wreads(h, s):
        off = (h % 16) * 4096
        r = []
        for nt in range(4):
            for t in range(2):
                r.append(f"ds_read_b64_tr_b16 {vr(WF[s]+4*nt+2*t,2)}, v{WA+nt} offset:{off+t*2048}")
        return r

    for h in range(PD):
        oload(h)
    a("s_barrier")
    stamp(a, 8)
    for x in wreads(0, 0):
        a(x)
    for h in range(32):
        s = h & 1
        vm.wait(("o", h))
        boundary = (h + 1) % 4 == 0 and h < 31
        nxt = wreads(h + 1, s ^ 1) if h < 31 else []
        a("s_waitcnt lgkmcnt(0)")
        if boundary:
            a("s_barrier")
        if h == 15:
            for nt in range(4):
                a(f"v_add_u32 v{WA+nt}, 65536, v{WA+nt}")
        k = 0
        for nt in range(4):
            for st in range(2):
                c = "0" if h == 0 else vr(ACC(nt, st))
                a(mfma(ACC(nt, st), WF[s] + 4 * nt, OR + 8 * (h % PD) + 4 * st, c))
                if k < len(nxt):
                    a(nxt[k]); k += 1
        if h + PD < 32:
            oload(h + PD)
    stamp(a, 9)
    YR = 32
    a(f"""
    s_barrier
    v_bfe_u32 v64, v{LANE}, 2, 2
    v_lshrrev_b32 v65, 4, v{LANE}
    v_lshlrev_b32 v65, 2, v65
    v_add_u32 v64, v64, v65
    v_lshlrev_b32 v64, 8, v64
    v_and_b32 v65, 3, v{LANE}
    v_lshlrev_b32 v65, 3, v65
    v_add_u32 v64, v64, v65
    s_lshl_b32 s73, s{S_WAVE}, 6
    s_add_u32 s73, s73, {L_Y}
    v_add_u32 v64, s73, v64
    """)
    for nt in range(4):
        for st in range(2):
            a(f"ds_read_b64_tr_b16 {vr(YR+4*nt+2*st,2)}, v64 offset:{nt*4096+st*32}")
    for st in range(2):
        for ntp in range(2):
            b = XR + 8 * st + 4 * ntp
            a(f"v_permlane16_swap_b32 v{b}, v{b+2}")
            a(f"v_permlane16_swap_b32 v{b+1}, v{b+3}")
    a("s_nop 0")
    for st in range(2):
        for ntp in range(2):
            b = XR + 8 * st + 4 * ntp
            a(f"v_permlane32_swap_b32 v{b}, v{b+2}")
            a(f"v_permlane32_swap_b32 v{b+1}, v{b+3}")
    for st in range(2):
        a(f"v_sub_f32 v{GR+2+st}, 1.0, v{GR+st}")
    a("s_waitcnt lgkmcnt(0)")
    T = 66
    OUT = 80
    for st in range(2):
        for nt in range(4):
            ntp, odd = nt >> 1, nt & 1
            xr = XR + 8 * st + 4 * ntp + 2 * odd
            yr = YR + 4 * nt + 2 * st
            ac = ACC(nt, st)
            unpack(a, T, xr, 0); unpack(a, T + 1, xr, 1); unpack(a, T + 2, xr + 1, 0); unpack(a, T + 3, xr + 1, 1)
            unpack(a, T + 4, yr, 0); unpack(a, T + 5, yr, 1); unpack(a, T + 6, yr + 1, 0); unpack(a, T + 7, yr + 1, 1)
            for e in range(4):
                a(f"v_mul_f32 v{T+e}, v{T+e}, v{T+4+e}")
            for e in range(4):
                a(f"v_mul_f32 v{T+e}, v{T+e}, v{GR+2+st}")
            for e in range(4):
                a(f"v_fmac_f32 v{T+e}, v{ac+e}, v{GR+st}")
            o = OUT + 8 * st + 4 * ntp + 2 * odd
            a(f"v_cvt_pk_bf16_f32 v{o}, v{T}, v{T+1}")
            a(f"v_cvt_pk_bf16_f32 v{o+1}, v{T+2}, v{T+3}")
    a("s_nop 1")
    for st in range(2):
        for ntp in range(2):
            b = OUT + 8 * st + 4 * ntp
            a(f"v_permlane32_swap_b32 v{b}, v{b+2}")
            a(f"v_permlane32_swap_b32 v{b+1}, v{b+3}")
    a("s_nop 0")
    for st in range(2):
        for ntp in range(2):
            b = OUT + 8 * st + 4 * ntp
            a(f"v_permlane16_swap_b32 v{b}, v{b+2}")
            a(f"v_permlane16_swap_b32 v{b+1}, v{b+3}")
    for st in range(2):
        for ntp in range(2):
            a(f"buffer_store_dwordx4 {vr(OUT+8*st+4*ntp)}, v{VX+st}, {sr(R_B)}, 0 offen offset:{64*ntp}")
    stamp(a, 10)
    stamp_flush(a)
    a.label("L_end")
    a("s_endpgm")


HEADER = f"""; gated_mix: g * linear_attention(x) + (1 - g) * x * h3_conv(k, v) in one persistent launch.
; @launch grid=(256,1,1) block=(512,1,1) lds={LDS_BYTES}
.amdgcn_target "amdgcn-amd-amdhsa--gfx950"
.text
.globl {KNAME}
.p2align 8
.type {KNAME},@function
{KNAME}:
"""

DESC = f""".section .rodata,"a"
.p2align 6
.amdhsa_kernel {KNAME}
  .amdhsa_next_free_vgpr 256
  .amdhsa_next_free_sgpr 102
  .amdhsa_accum_offset 256
  .amdhsa_group_segment_fixed_size 0
  .amdhsa_kernarg_size 104
  .amdhsa_user_sgpr_count 2
  .amdhsa_user_sgpr_kernarg_segment_ptr 1
  .amdhsa_system_sgpr_workgroup_id_x 1
  .amdhsa_float_denorm_mode_32 3
.end_amdhsa_kernel
"""


def generate(cfg=None):
    global STAMPS
    cfg = cfg or {}
    STAMPS = cfg.get("stamps", 0)
    a = Asm()
    gen_prologue(a, cfg)
    gen_loader(a, cfg)
    gen_prepass(a, cfg)
    gen_conv(a, cfg)
    gen_compute(a, cfg)
    return HEADER + a.text() + DESC


if __name__ == "__main__":
    cfg = {}
    out = f"cdna_kernels/{NAME}.s"
    for arg in sys.argv[1:]:
        if arg.startswith("-o"):
            out = arg[2:]
        else:
            k, v = arg.split("=")
            cfg[k] = int(v)
    open(out, "w").write(generate(cfg))
    print("wrote", out)
```

```python
import sys

NAME = "gated_mix__linear_attn_block__ssm_conv_h3__prompt"
KNAME = NAME + "_kernel"

WS_O = 0
WS_UT = 4 << 20
WS_YT = 8 << 20
WS_KVP = 12 << 20
WS_ZP = 14 << 20
WS_G = (14 << 20) + (1 << 19)
WS_FL = 15 << 20
WS_SIZE = 32 << 20
WS_TS = 24 << 20

SLOT = 40960
NS = 4
L_U = 122880
U_CH = 4608
COPY = 4160
H_CH = 4 * COPY
L_Y = 131072
L_X = 147456
L_KVX = L_X
L_ZX = L_X + 8192
L_OX = L_X + 8448
L_FLG = L_X + 12544
LDS_BYTES = 163840
F_KVX, F_OX, F_CONV, F_U, F_RED, F_NONCE = 0, 8, 24, 28, 32, 48

LOG2E = 0x3FB8AA3B
EPS6 = 0x358637BD
SPIN_MAX = 200000

P_X, P_WQKV, P_WO, P_K, P_V, P_SK, P_H = 16, 18, 20, 24, 26, 28, 30
P_D, P_GW, P_OUT, P_DBG, P_WS = 32, 34, 36, 38, 40
R_WS = 44
R_A, R_B, R_C, R_D = 48, 52, 56, 60
S_WAVE, S_MT, S_HP, S_ROT, S_NONCE = 64, 65, 66, 67, 68
S_MT3, S_NT3 = 69, 70
S_URDY = 42
S_HQ = 43
LANE = 250

STAMPS = 0


class Asm:
    def __init__(self):
        self.lines = []
        self.nlab = 0

    def __call__(self, s):
        for ln in s.split("\n"):
            ln = ln.strip()
            if ln:
                self.lines.append(ln if ln.endswith(":") else "  " + ln)

    def label(self, s):
        self.lines.append(s + ":")

    def raw(self, s):
        self.lines.append(s)

    def newlab(self, p):
        self.nlab += 1
        return f"{p}_{self.nlab}"

    def text(self):
        return "\n".join(self.lines) + "\n"


class VM:
    def __init__(self, a):
        self.a = a
        self.q = []

    def issue(self, tag, n=1):
        self.q += [tag] * n

    def wait(self, tag):
        if tag not in self.q:
            return
        idx = max(i for i, t in enumerate(self.q) if t == tag)
        n = len(self.q) - 1 - idx
        self.a(f"s_waitcnt vmcnt({min(n, 63)})")
        self.q = self.q[idx + 1:]

    def drain(self):
        self.a("s_waitcnt vmcnt(0)")
        self.q = []


def vr(b, n=4):
    return f"v[{b}:{b+n-1}]"


def sr(b, n=4):
    return f"s[{b}:{b+n-1}]"


def srd(a, dst, src, size):
    a(f"s_mov_b32 s{dst}, s{src}")
    a(f"s_and_b32 s{dst+1}, s{src+1}, 0xffff")
    a(f"s_mov_b32 s{dst+2}, {size:#x}")
    a(f"s_mov_b32 s{dst+3}, 0x20000")


def stamp(a, idx):
    if STAMPS:
        a("s_memtime s[100:101]" if STAMPS == 2 else "s_memrealtime s[100:101]")
        a("s_waitcnt lgkmcnt(0)")
        a(f"s_mov_b32 s{84+idx}, s100")


def stamp_flush(a):
    if STAMPS:
        a("s_mov_b64 exec, 1")
        a(f"s_lshl_b32 s98, s2, 3\ns_add_u32 s98, s98, s{S_WAVE}\ns_lshl_b32 s98, s98, 6\ns_add_u32 s98, s98, {WS_TS:#x}")
        for i in range(14):
            a(f"v_mov_b32 v{232+i}, s{84+i}")
        a("v_mov_b32 v231, 0")
        for j in range(4):
            a(f"buffer_store_dwordx4 {vr(232+4*j)}, v231, {sr(R_WS)}, s98 offen offset:{16*j}")


def mfma(d, x, y, c):
    return f"v_mfma_f32_16x16x32_bf16 {vr(d)}, {vr(x)}, {vr(y)}, {c}"


def unpack(a, dst, src, half):
    if half == 0:
        a(f"v_lshlrev_b32 v{dst}, 16, v{src}")
    else:
        a(f"v_and_b32 v{dst}, 0xffff0000, v{src}")


def weave(a, mf, cur_tags, nxt, start=0, hooks=None, waits=None):
    queue = list(cur_tags)
    waits = sorted(waits) if waits is not None else list(range(len(mf)))
    done = -1
    k = 0
    for i, (txt, need) in enumerate(mf):
        if i in waits:
            nxtw = min([w for w in waits if w > i], default=len(mf))
            needs = [t for _, nd in mf[i:nxtw] for t in nd]
            last = max([cur_tags.index(t) for t in needs], default=-1)
            if last > done:
                n = len(queue) - 1 - last
                a(f"s_waitcnt lgkmcnt({min(n, 15)})")
                done = last if n <= 15 else len(queue) - 1 - 15
        a(txt)
        if hooks and i in hooks:
            a(hooks[i])
            if "lgkmcnt(0)" in hooks[i]:
                done = len(queue) - 1
        if i >= start and k < len(nxt):
            a(nxt[k][0])
            queue.append(("n", k))
            k += 1
    assert k == len(nxt)


def phi(a, regs, tmp, s_l2e, s_eps):
    n = len(regs)
    for i in range(n):
        a(f"v_mul_f32 v{tmp+i}, s{s_l2e}, v{regs[i]}")
    for i in range(n):
        a(f"v_exp_f32 v{tmp+i}, v{tmp+i} clamp")
    for i in range(n):
        a(f"v_add_f32 v{regs[i]}, 1.0, v{regs[i]}")
    for i in range(n):
        a(f"v_max_f32 v{regs[i]}, v{regs[i]}, v{tmp+i}")
    for i in range(n):
        a(f"v_add_f32 v{regs[i]}, s{s_eps}, v{regs[i]}")


def flag_off(typ, s_group, s_prod, dst, a):
    a(f"s_lshl_b32 s{dst}, s{s_group}, 4")
    a(f"s_add_u32 s{dst}, s{dst}, s{s_prod}")
    a(f"s_lshl_b32 s{dst}, s{dst}, 7")
    a(f"s_add_u32 s{dst}, s{dst}, {WS_FL + typ*32768:#x}")


def signal(a, s_off, idx_bytes, vt):
    a(f"v_mov_b32 v{vt}, s{S_NONCE}")
    a(f"v_mov_b32 v{vt+1}, {idx_bytes}" if isinstance(idx_bytes, int) else f"v_mov_b32 v{vt+1}, s{idx_bytes[0]}")
    a("s_mov_b64 exec, 1")
    a(f"buffer_store_dword v{vt}, v{vt+1}, {sr(R_WS)}, s{s_off} offen sc1")
    a("s_mov_b64 exec, -1")


def poll_lines(a, v_off, s_base, nd, vt, st):
    lab = a.newlab("L_poll")
    done = a.newlab("L_pdone")
    mask = sum(((1 << nd) - 1) << (4 * i) for i in range(16))
    a(f"s_mov_b32 s{st}, {mask & 0xffffffff:#x}")
    a(f"s_mov_b32 s{st+1}, {mask >> 32:#x}")
    a(f"s_mov_b32 s{st+2}, 0")
    a.label(lab)
    a(f"buffer_load_dword v{vt}, v{v_off}, {sr(R_WS)}, s{s_base} offen sc1")
    a("s_waitcnt vmcnt(0)")
    a(f"v_cmp_eq_u32 vcc, s{S_NONCE}, v{vt}")
    a(f"s_add_u32 s{st+2}, s{st+2}, 1")
    a(f"s_and_b64 vcc, vcc, s[{st}:{st+1}]")
    a(f"s_cmp_eq_u64 vcc, s[{st}:{st+1}]")
    a(f"s_cbranch_scc1 {done}")
    a(f"s_cmp_lt_u32 s{st+2}, {SPIN_MAX}")
    a(f"s_cbranch_scc1 {lab}")
    a.label(done)


def lds_poll(a, v_addr, off, target, vt, st):
    lab = a.newlab("L_lp")
    done = a.newlab("L_lpd")
    a(f"s_mov_b32 s{st+1}, 0")
    a.label(lab)
    a(f"ds_read_b32 v{vt}, v{v_addr} offset:{off}")
    a("s_waitcnt lgkmcnt(0)")
    a(f"v_readfirstlane_b32 s{st}, v{vt}")
    a(f"s_add_u32 s{st+1}, s{st+1}, 1")
    a(f"s_cmp_ge_u32 s{st}, {target}")
    a(f"s_cbranch_scc1 {done}")
    a(f"s_cmp_lt_u32 s{st+1}, {SPIN_MAX*16}")
    a(f"s_cbranch_scc1 {lab}")
    a.label(done)


def gen_prologue(a, cfg):
    if cfg.get("map", 0) == 0:
        MAPA, MAPB = "s_and_b32 s74, s73, 7", "s_lshr_b32 s74, s73, 3"
    else:
        MAPA, MAPB = "s_lshr_b32 s74, s73, 2", "s_and_b32 s74, s73, 3"
    a(f"""
    s_cmp_ge_u32 s2, 256
    s_cbranch_scc1 L_end
    s_load_dwordx16 s[16:31], s[0:1], 0
    s_load_dwordx8 s[32:39], s[0:1], 64
    s_load_dwordx2 s[40:41], s[0:1], 96
    v_lshrrev_b32 v1, 6, v0
    v_and_b32 v{LANE}, 63, v0
    s_and_b32 s72, s2, 7
    v_readfirstlane_b32 s{S_WAVE}, v1
    s_lshr_b32 s73, s2, 3
    s_and_b32 s{S_MT}, s72, 1
    s_lshl_b32 s{S_MT}, s{S_MT}, 3
    {MAPA}
    s_add_u32 s{S_MT}, s{S_MT}, s74
    s_lshr_b32 s{S_HP}, s72, 1
    s_lshl_b32 s{S_HP}, s{S_HP}, 2
    {MAPB}
    s_add_u32 s{S_HP}, s{S_HP}, s74
    s_and_b32 s{S_MT3}, s72, 3
    s_lshl_b32 s{S_MT3}, s{S_MT3}, 2
    s_and_b32 s74, s73, 3
    s_add_u32 s{S_MT3}, s{S_MT3}, s74
    s_lshr_b32 s{S_NT3}, s72, 2
    s_lshl_b32 s{S_NT3}, s{S_NT3}, 3
    s_lshr_b32 s74, s73, 2
    s_add_u32 s{S_NT3}, s{S_NT3}, s74
    """)
    a(f"s_add_u32 s{S_HQ}, s{S_HP}, {cfg.get('hq', 4)}\ns_and_b32 s{S_HQ}, s{S_HQ}, 15")
    rot = cfg.get("rot", 2)
    if rot == 0:
        a(f"s_mov_b32 s{S_ROT}, 0")
    elif rot == 1:
        a(f"s_lshl_b32 s{S_ROT}, s72, 1")
    else:
        a(f"s_add_u32 s{S_ROT}, s{S_MT}, s{S_HP}\ns_and_b32 s{S_ROT}, s{S_ROT}, 15")
    if STAMPS:
        for i in range(14):
            a(f"s_mov_b32 s{84+i}, 0")
    a("s_waitcnt lgkmcnt(0)")
    srd(a, R_WS, P_WS, WS_SIZE)
    stamp(a, 0)
    a(f"""
    s_cmp_lt_u32 s{S_WAVE}, 4
    s_cbranch_scc1 L_compute
    s_cmp_ge_u32 s{S_WAVE}, 6
    s_cbranch_scc1 L_prepass
    """)


def gen_loader(a, cfg):
    srd(a, R_A, P_X, 4 << 20)
    srd(a, R_B, P_WQKV, 6 << 20)
    XG, WG = 1, 3
    a(f"""
    s_sub_u32 s71, s{S_WAVE}, 4
    v_lshrrev_b32 v5, 3, v{LANE}
    v_and_b32 v6, 7, v{LANE}
    v_lshrrev_b32 v7, 4, v{LANE}
    v_xor_b32 v8, v6, v7
    v_lshlrev_b32 v8, 4, v8
    v_lshlrev_b32 v9, 11, v5
    v_add_u32 v{XG}, v8, v9
    v_xor_b32 v{XG+1}, 64, v{XG}
    v_and_b32 v7, 1, v7
    v_lshlrev_b32 v7, 1, v7
    v_xor_b32 v8, v6, v7
    v_lshlrev_b32 v8, 4, v8
    v_mul_u32_u24 v9, 6144, v5
    v_add_u32 v{WG}, v8, v9
    v_xor_b32 v{WG+1}, 64, v{WG}
    s_lshl_b32 s72, s{S_MT}, 18
    s_lshl_b32 s73, s71, 17
    s_add_u32 s72, s72, s73
    s_lshl_b32 s73, s71, 13
    s_lshl_b32 s74, s71, 12
    s_add_u32 s74, s74, 16384
    s_lshl_b32 s75, s{S_HP}, 7
    s_mul_i32 s76, s71, 196608
    s_add_u32 s75, s75, s76
    s_lshl_b32 s4, s{S_HQ}, 7
    s_add_u32 s4, s4, s76
    """)
    first_slot = NS - 1

    def issue():
        a(f"""
        s_add_u32 s78, s{S_ROT}, s76
        s_and_b32 s78, s78, 15
        s_lshl_b32 s79, s78, 7
        s_add_u32 s79, s79, s72
        s_mul_i32 s80, s78, 393216
        s_add_u32 s5, s80, s4
        s_add_u32 s80, s80, s75
        s_add_u32 s81, s77, s73
        s_add_u32 s82, s77, s74
        """)
        for i in range(8):
            a(f"s_add_u32 m0, s81, {i*1024}")
            a(f"s_add_u32 s83, s79, {i*16384}")
            a(f"buffer_load_dwordx4 v{XG + (i & 1)}, {sr(R_A)}, s83 offen lds")
        for seg in range(3):
            for i in range(4):
                a(f"s_add_u32 m0, s82, {seg*8192 + i*1024}")
                a(f"s_add_u32 s83, {'s5' if seg == 0 else 's80'}, {seg*2048 + i*49152}")
                a(f"buffer_load_dwordx4 v{WG + (i & 1)}, {sr(R_B)}, s83 offen lds")
        a(f"""
        s_add_u32 s76, s76, 1
        s_add_u32 s77, s77, {SLOT}
        s_cmp_eq_u32 s77, {NS*SLOT}
        s_cselect_b32 s77, 0, s77
        """)

    a(f"s_mov_b32 s76, 0\ns_mov_b32 s77, {first_slot*SLOT}")
    stamp(a, 1)
    a.label("L_ld_pro")
    issue()
    a("s_cmp_lt_u32 s76, 2\ns_cbranch_scc1 L_ld_pro")
    a("s_waitcnt vmcnt(20)\ns_barrier")
    if cfg.get("ldtl", 0): stamp(a, 8)
    a.label("L_ld_pro2")
    issue()
    a("s_cmp_lt_u32 s76, 4\ns_cbranch_scc1 L_ld_pro2")
    prof = cfg.get("ldprof", 0)
    if cfg.get("ldtl", 0): stamp(a, 9)
    if prof:
        a("s_mov_b32 s92, 0\ns_mov_b32 s93, 0\ns_mov_b32 s94, 0\ns_memtime s[4:5]\ns_waitcnt lgkmcnt(0)")
    a.label("L_ld_loop")
    a("s_waitcnt vmcnt(40)")
    if prof:
        a("s_memtime s[6:7]\ns_waitcnt lgkmcnt(0)\ns_sub_u32 s8, s6, s4\ns_add_u32 s92, s92, s8")
    a("s_barrier")
    if prof:
        a("s_memtime s[8:9]\ns_waitcnt lgkmcnt(0)\ns_sub_u32 s10, s8, s6\ns_add_u32 s93, s93, s10")
    issue()
    if prof:
        a("s_memtime s[4:5]\ns_waitcnt lgkmcnt(0)\ns_sub_u32 s10, s4, s8\ns_add_u32 s94, s94, s10")
    a("s_cmp_lt_u32 s76, 16\ns_cbranch_scc1 L_ld_loop")
    if cfg.get("ldtl", 0): stamp(a, 10)
    a("s_waitcnt vmcnt(40)\ns_barrier")
    if cfg.get("ldtl", 0): stamp(a, 11)
    nh = h_loads(a)
    a(f"s_waitcnt vmcnt({20+nh})\ns_barrier")
    if cfg.get("ldtl", 0): stamp(a, 12)
    a(f"s_waitcnt vmcnt({nh})\ns_barrier")
    if cfg.get("ldtl", 0): stamp(a, 13)
    stamp(a, 2)
    a("s_branch L_conv")


HD, HE, HFX, HDV = 48, 64, 72, 73


def h_loads(a):
    srd(a, R_C, P_H, 4 << 20)
    srd(a, R_D, P_D, 2048)
    a(f"""
    s_lshl_b32 s4, s2, 2
    s_add_u32 s4, s4, s{S_WAVE}
    s_sub_u32 s4, s4, 4
    s_lshl_b32 s5, s4, 12
    s_lshl_b32 s6, s4, 1
    v_lshlrev_b32 v74, 4, v{LANE}
    v_lshrrev_b32 v75, 4, v{LANE}
    v_and_b32 v76, 15, v{LANE}
    v_add_u32 v75, v75, v76
    v_subrev_u32 v75, 15, v75
    v_max_i32 v75, 0, v75
    v_lshlrev_b32 v75, 1, v75
    v_mov_b32 v76, 0
    """)
    for j in range(4):
        a(f"buffer_load_dwordx4 {vr(HD+4*j)}, v74, {sr(R_C)}, s5 offen offset:{j*1024}")
        a(f"buffer_load_dwordx2 {vr(HE+2*j,2)}, v74, {sr(R_C)}, s5 offen offset:{j*1024+16}")
    a(f"buffer_load_ushort v{HFX}, v75, {sr(R_C)}, s5 offen")
    a(f"buffer_load_ushort v{HDV}, v76, {sr(R_D)}, s6 offen")
    return 10


def u_loads(a):
    a(f"""
    s_lshl_b32 s82, s2, 2
    s_lshl_b32 s83, s71, 1
    s_add_u32 s82, s82, s83
    s_lshl_b32 s82, s82, 12
    s_add_u32 s82, s82, {WS_UT:#x}
    s_add_u32 s83, s82, 4096
    """)
    for c in range(2):
        for j in range(4):
            a(f"buffer_load_dwordx4 {vr(16+16*c+4*j)}, v8, {sr(R_WS)}, s{82+c} offen offset:{j*1024} sc1")


def gen_prepass(a, cfg):
    a.label("L_prepass")
    vm = VM(a)
    srd(a, R_A, P_K, 4 << 20)
    srd(a, R_B, P_V, 4 << 20)
    srd(a, R_C, P_X, 4 << 20)
    KR, VR, WT, GX, GW = 16, 60, 92, 108, 140
    KA, KB, SKA, GA, UA = 2, 3, 4, 5, 6
    T = 152
    a(f"s_sub_u32 s71, s{S_WAVE}, 6")
    srd(a, R_D, P_DBG, 256)
    a(f"""
    s_cmp_lg_u32 s2, 0
    s_cbranch_scc1 L_notag
    s_cmp_lg_u32 s71, 0
    s_cbranch_scc1 L_notag
    s_memrealtime s[72:73]
    s_waitcnt lgkmcnt(0)
    s_or_b32 s72, s72, 1
    v_mov_b32 v13, s72
    v_mov_b32 v14, 0
    s_mov_b64 exec, 1
    buffer_store_dword v13, v14, {sr(R_D)}, 0 offen sc1
    s_mov_b64 exec, -1
    """)
    a.label("L_notag")
    a(f"""
    v_and_b32 v8, 7, v{LANE}
    v_lshrrev_b32 v9, 3, v{LANE}
    s_lshl_b32 s72, s71, 3
    s_lshl_b32 s73, s{S_MT}, 4
    s_add_u32 s72, s72, s73
    v_add_u32 v9, s72, v9
    s_lshl_b32 s73, s{S_HP}, 6
    v_lshlrev_b32 v10, 3, v8
    v_add_u32 v10, s73, v10
    v_lshlrev_b32 v11, 14, v9
    v_lshlrev_b32 v12, 1, v10
    v_add_u32 v{KB}, v11, v12
    v_subrev_u32 v{KA}, 6144, v{KB}
    v_lshlrev_b32 v{SKA}, 3, v10
    v_lshlrev_b32 v{GA}, 5, v{LANE}
    v_lshlrev_b32 v11, 12, v10
    v_lshlrev_b32 v12, 4, v9
    v_add_u32 v{UA}, v11, v12
    s_mov_b32 s74, 4096
    s_mov_b32 s75, 8192
    s_mov_b32 s76, 12288
    s_lshl_b32 s77, s{S_MT}, 7
    s_lshl_b32 s78, s{S_HP}, 3
    s_add_u32 s77, s77, s78
    s_lshl_b32 s78, s71, 2
    s_add_u32 s77, s77, s78
    s_lshl_b32 s78, s77, 11
    s_barrier
    """)
    soff = ["0", "s74", "s75", "s76"]

    def rowload(dst, va, srdn, i):
        if cfg.get("exp", 0) & 8:
            a(f"buffer_load_dwordx4 {vr(dst)}, v{SKA}, {sr(srdn)}, 0 offen")
            vm.issue("pre")
            return
        a(f"buffer_load_dwordx4 {vr(dst)}, v{va}, {sr(srdn)}, {soff[i//2]} offen offset:{(i%2)*2048}")
        vm.issue("pre")

    a("s_barrier")
    for i in range(3):
        rowload(KR + 4 * i, KA, R_A, i)
    for i in range(8):
        rowload(KR + 12 + 4 * i, KB, R_A, i)
    a("s_barrier")
    for i in range(8):
        rowload(VR + 4 * i, KB, R_B, i)
    srd(a, R_A, P_SK, 8192)
    for i in range(4):
        a(f"buffer_load_dwordx4 {vr(WT+4*i)}, v{SKA}, {sr(R_A)}, 0 offen offset:{16*i}")
        vm.issue("pre")
    a("s_barrier")
    for r in range(4):
        a(f"s_add_u32 s79, s78, {r*2048}")
        for i in range(2):
            a(f"buffer_load_dwordx4 {vr(GX+8*r+4*i)}, v{GA}, {sr(R_C)}, s79 offen offset:{16*i}")
            vm.issue("gate")
    srd(a, R_B, P_GW, 2048)
    for i in range(2):
        a(f"buffer_load_dwordx4 {vr(GW+4*i)}, v{GA}, {sr(R_B)}, 0 offen offset:{16*i}")
        vm.issue("gate")
    a(f"v_mov_b32 v14, 0\nbuffer_load_dword v15, v14, {sr(R_D)}, 0 offen sc1")
    vm.issue("tag")

    def channel(j):
        if cfg.get("exp", 0) & 4:
            return
        dw, half = j >> 1, j & 1
        W, Kf, Of, P = T, T + 4, T + 16, T + 24
        for tau in range(4):
            unpack(a, W + tau, WT + 2 * j + (tau >> 1), tau & 1)
        for i in range(11):
            unpack(a, Kf + i, KR + 4 * i + dw, half)
        for i in range(8):
            a(f"v_mul_f32 v{Of+i}, v{W+3}, v{Kf+i}")
        for tau in (2, 1, 0):
            for i in range(8):
                a(f"v_fmac_f32 v{Of+i}, v{W+tau}, v{Kf+i+3-tau}")
        for i in range(8):
            unpack(a, Kf + i, VR + 4 * i + dw, half)
        for i in range(8):
            a(f"v_mul_f32 v{Of+i}, v{Of+i}, v{Kf+i}")
        P = P + 4 * (j & 1)
        for m in range(4):
            a(f"v_cvt_pk_bf16_f32 v{P+m}, v{Of+7-2*m}, v{Of+6-2*m}")
        a(f"s_mov_b32 s80, {WS_UT + j*4096:#x}")
        a(f"buffer_store_dwordx4 {vr(P)}, v{UA}, {sr(R_WS)}, s80 offen sc1")
        vm.issue("ut")

    a("s_barrier")
    vm.wait("pre")
    for b in range(4):
        channel(2 * b)
        channel(2 * b + 1)
        a("s_barrier")
    vm.wait("gate")
    Z = T + 32
    for r in range(4):
        a(f"v_mov_b32 v{Z+r}, 0")
    for i in range(8):
        for r in range(4):
            a(f"v_dot2_f32_bf16 v{Z+r}, v{GX+8*r+i}, v{GW+i}, v{Z+r}")
    for ctl in ("row_shr:1 row_mask:0xf", "row_shr:2 row_mask:0xf", "row_shr:4 row_mask:0xf",
                "row_shr:8 row_mask:0xf", "row_bcast:15 row_mask:0xa", "row_bcast:31 row_mask:0xc"):
        a("s_nop 1")
        for r in range(4):
            a(f"v_add_f32_dpp v{Z+r}, v{Z+r}, v{Z+r} {ctl} bank_mask:0xf")
    a(f"s_mov_b32 s80, {LOG2E ^ 0x80000000:#x}")
    for r in range(4):
        a(f"v_mul_f32 v{Z+r}, s80, v{Z+r}")
    for r in range(4):
        a(f"v_exp_f32 v{Z+r}, v{Z+r}")
    a("s_nop 0")
    for r in range(4):
        a(f"v_add_f32 v{Z+r}, 1.0, v{Z+r}")
    for r in range(4):
        a(f"v_rcp_f32 v{Z+r}, v{Z+r}")
    a(f"""
    s_lshl_b32 s80, s77, 2
    s_add_u32 s80, s80, {WS_G:#x}
    v_mov_b32 v{Z+4}, 0
    v_cmp_eq_u32 vcc, 63, v{LANE}
    s_and_saveexec_b64 s[82:83], vcc
    buffer_store_dwordx4 {vr(Z)}, v{Z+4}, {sr(R_WS)}, s80 offen sc1
    s_mov_b64 exec, s[82:83]
    """)
    vm.issue("g")
    lab = a.newlab("L_tag")
    vm.wait("tag")
    a(f"v_readfirstlane_b32 s{S_NONCE}, v15\ns_mov_b32 s80, 0\ns_cmp_lg_u32 s{S_NONCE}, 0\ns_cbranch_scc1 L_tagok")
    a.label(lab)
    a(f"""
    buffer_load_dword v15, v14, {sr(R_D)}, 0 offen sc1
    s_waitcnt vmcnt(0)
    v_readfirstlane_b32 s{S_NONCE}, v15
    s_add_u32 s80, s80, 1
    s_cmp_lg_u32 s{S_NONCE}, 0
    s_cbranch_scc1 L_tagok
    s_cmp_lt_u32 s80, {SPIN_MAX}
    s_cbranch_scc1 {lab}
    """)
    a.label("L_tagok")
    a("s_barrier")
    a("s_barrier")
    vm.drain()
    flag_off(0, S_HP, S_MT, 80, a)
    a("s_lshl_b32 s81, s71, 2")
    signal(a, 80, ("81", ), 8)
    for b in (11, 12):
        a("s_barrier")
    a(f"""
    v_lshrrev_b32 v8, 2, v{LANE}
    v_lshlrev_b32 v10, 7, v8
    v_and_b32 v9, 3, v{LANE}
    v_lshlrev_b32 v9, 2, v9
    v_add_u32 v10, v10, v9
    v_lshlrev_b32 v11, 11, v8
    v_add_u32 v11, v11, v9
    s_lshr_b32 s80, s2, 4
    s_lshl_b32 s80, s80, 11
    s_add_u32 s80, s80, {WS_FL:#x}
    s_lshl_b32 s81, s{S_MT3}, 7
    s_add_u32 s81, s81, {WS_FL:#x}
    buffer_load_dword v12, v10, {sr(R_WS)}, s80 offen sc1
    buffer_load_dword v13, v11, {sr(R_WS)}, s81 offen sc1
    """)
    nh = h_loads(a)
    a(f"""
    s_barrier
    s_mov_b32 s72, 0x33333333
    s_mov_b32 s73, 0x33333333
    s_waitcnt vmcnt({nh})
    v_cmp_eq_u32 vcc, s{S_NONCE}, v12
    v_cmp_eq_u32 s[74:75], s{S_NONCE}, v13
    s_nop 3
    s_and_b64 vcc, vcc, s[74:75]
    s_and_b64 vcc, vcc, s[72:73]
    s_cmp_eq_u64 vcc, s[72:73]
    s_cselect_b32 s{S_URDY}, 1, 0
    """)
    a(f"""
    v_mov_b32 v16, 0
    v_mov_b32 v17, 0
    v_mov_b32 v18, 0
    v_mov_b32 v19, 0
    v_mov_b32 v12, {L_FLG}
    v_mov_b32 v13, s{S_NONCE}
    ds_write_b128 v12, v[16:19]
    ds_write_b128 v12, v[16:19] offset:16
    ds_write_b128 v12, v[16:19] offset:32
    ds_write_b32 v12, v13 offset:{F_NONCE}
    v_lshlrev_b32 v8, 4, v{LANE}
    s_mul_i32 s82, s71, {2*U_CH}
    s_add_u32 s82, s82, {L_U}
    v_add_u32 v{LANE-2}, s82, v8
    v_and_b32 v9, 31, v{LANE}
    v_lshlrev_b32 v9, 4, v9
    v_add_u32 v9, s82, v9
    ds_write_b128 v9, v[16:19]
    ds_write_b128 v9, v[16:19] offset:{U_CH}
    s_cmp_eq_u32 s{S_URDY}, 0
    s_cbranch_scc1 L_pp_late
    """)
    u_loads(a)
    a.label("L_pp_late")
    a("s_waitcnt lgkmcnt(0)\ns_barrier\ns_barrier")
    a(f"s_cmp_eq_u32 s{S_URDY}, 1\ns_cbranch_scc1 L_pp_done")
    poll_lines(a, 10, 80, 2, 12, 72)
    poll_lines(a, 11, 81, 2, 12, 72)
    u_loads(a)
    a.label("L_pp_done")
    stamp(a, 2)


def gen_conv(a, cfg):
    a.label("L_conv")
    ACC, AP = 0, 160
    AF, BF = [32, 96], [64, 128]
    VA, VB, VY = 164, 165, 166
    a(f"""
    s_sub_u32 s71, s{S_WAVE}, 4
    s_lshl_b32 s72, s2, 2
    s_add_u32 s72, s72, s71
    s_mul_i32 s73, s71, {H_CH}
    s_lshl_b32 s74, s72, 12
    v_lshlrev_b32 v1, 4, v{LANE}
    v_lshrrev_b32 v2, 4, v{LANE}
    v_and_b32 v3, 15, v{LANE}
    v_add_u32 v4, v2, v3
    v_subrev_u32 v4, 15, v4
    v_add_u32 v5, s73, v1
    v_mov_b32 v10, 0
    v_mul_u32_u24 v14, {COPY}, v2
    v_lshlrev_b32 v15, 1, v3
    v_add_u32 v14, v14, v15
    v_add_u32 v14, s73, v14
    v_and_b32 v6, 3, v3
    v_mul_u32_u24 v6, {COPY}, v6
    v_lshlrev_b32 v7, 4, v2
    v_add_u32 v6, v6, v7
    v_lshrrev_b32 v7, 2, v3
    v_lshlrev_b32 v7, 3, v7
    v_add_u32 v6, v6, v7
    v_add_u32 v{VA}, s73, v6
    v_lshlrev_b32 v6, 1, v3
    v_add_u32 v6, 1, v6
    v_sub_u32 v6, v6, v2
    v_lshlrev_b32 v6, 4, v6
    s_mul_i32 s75, s71, {U_CH}
    s_add_u32 s75, s75, {L_U + 64}
    v_add_u32 v{VB}, s75, v6
    v_lshlrev_b32 v6, 5, v3
    v_lshlrev_b32 v7, 3, v2
    v_add_u32 v{VY}, v6, v7
    v_mov_b32 v9, {L_FLG}
    ds_read_b32 v11, v9 offset:{F_NONCE}
    s_waitcnt vmcnt(0)
    """)
    a("s_cmp_lt_u32 s71, 2\ns_cbranch_scc1 L_conv_nou")
    for c in range(2):
        for j in range(4):
            a(f"ds_write_b128 v{LANE-2}, {vr(16+16*c+4*j)} offset:{c*U_CH + 512 + j*1024}")
    a(f"""
    v_mov_b32 v12, 1
    s_waitcnt lgkmcnt(0)
    s_mov_b64 exec, 1
    ds_add_u32 v9, v12 offset:{F_U}
    s_mov_b64 exec, -1
    """)
    a.label("L_conv_nou")
    TB = 76
    for j in range(4):
        d = [HD + 4 * j + m for m in range(4)] + [HE + 2 * j, HE + 2 * j + 1]
        for m in range(4):
            a(f"v_alignbit_b32 v{TB+m}, v{d[m+1]}, v{d[m]}, 16")
        for m in range(4):
            a(f"v_mov_b32 v{TB+4+m}, v{d[m+1]}")
        for m in range(4):
            a(f"v_alignbit_b32 v{TB+8+m}, v{d[m+2]}, v{d[m+1]}, 16")
        for m in range(2):
            a(f"v_mov_b32 v{TB+12+m}, v{d[m+2]}")
        for m in range(2):
            a(f"v_mov_b32 v{TB+14+m}, v{d[m+4]}")
        for c in range(4):
            a(f"ds_write_b128 v5, {vr(TB+4*c)} offset:{c*COPY + 32 + j*1024}")
        TB = 92 if TB == 76 else 76
    a(f"""
    v_cmp_gt_i32 vcc, 0, v4
    v_sub_u32 v16, 15, v3
    v_lshrrev_b32 v17, 3, v16
    v_cndmask_b32 v6, v{HFX}, v10, vcc
    v_and_b32 v18, 1, v16
    v_lshlrev_b32 v18, 4, v18
    v_lshlrev_b32 v8, v18, v{HDV}
    v_cmp_eq_u32 vcc, v17, v2
    ds_write_b16 v14, v6
    v_bfe_u32 v19, v16, 1, 2
    v_cndmask_b32 v8, v10, v8, vcc
    """)
    for m in range(4):
        a(f"v_cmp_eq_u32 vcc, {m}, v19")
        a("s_nop 1")
        a(f"v_cndmask_b32 v{AP+m}, v10, v8, vcc")
    a(f"s_waitcnt lgkmcnt(0)\nv_readfirstlane_b32 s{S_NONCE}, v11")
    lds_poll(a, 9, F_U, 2, 12, 76)
    stamp(a, 3)

    def rd(rho, s):
        r = []
        for i in range(8):
            r.append(f"ds_read_b128 {vr(BF[s]+4*i)}, v{VB} offset:{512*i + 64*(7-rho)}")
            n = 8 * i + rho
            r.append(f"ds_read_b64 {vr(AF[s]+4*i,2)}, v{VA} offset:{64*n}")
            r.append(f"ds_read_b64 {vr(AF[s]+4*i+2,2)}, v{VA} offset:{64*n+8}")
        return r

    def mm(rho, s):
        m = []
        for T in range(8):
            for i in range(T + 1):
                c = "0" if (rho == 0 and i == 0) else vr(ACC + 4 * T)
                m.append(mfma(ACC + 4 * T, AF[s] + 4 * i, BF[s] + 4 * (T - i), c))
            if rho == 0:
                m.append(mfma(ACC + 4 * T, AP, BF[s] + 4 * T, vr(ACC + 4 * T)))
        return m

    for x in rd(0, 0):
        a(x)
    for rho in range(8):
        s = rho & 1
        a("s_waitcnt lgkmcnt(0)")
        nxt = rd(rho + 1, s ^ 1) if rho < 7 else []
        k = 0
        for x in mm(rho, s):
            a(x)
            if k < len(nxt):
                a(nxt[k]); k += 1
        assert k == len(nxt)
    a("s_nop 7")
    stamp(a, 4)
    a(f"s_add_u32 s75, s74, {WS_YT:#x}")
    for T in range(8):
        a(f"v_cvt_pk_bf16_f32 v{32+2*T}, v{ACC+4*T}, v{ACC+4*T+1}")
        a(f"v_cvt_pk_bf16_f32 v{33+2*T}, v{ACC+4*T+2}, v{ACC+4*T+3}")
    for T in range(8):
        a(f"buffer_store_dwordx2 {vr(32+2*T,2)}, v{VY}, {sr(R_WS)}, s75 offen offset:{512*T} sc1")
    a(f"""
    v_mov_b32 v2, {L_FLG}
    v_mov_b32 v3, 1
    s_mov_b64 exec, 1
    ds_add_u32 v2, v3 offset:{F_CONV}
    s_mov_b64 exec, -1
    s_waitcnt vmcnt(0)
    s_lshr_b32 s76, s2, 4
    s_and_b32 s77, s2, 15
    """)
    flag_off(3, 76, 77, 78, a)
    a("s_lshl_b32 s79, s71, 2")
    signal(a, 78, ("79", ), 4)
    lds_poll(a, 2, F_CONV, 4, 4, 76)
    stamp(a, 5)
    a("s_cmp_ge_u32 s71, 2\ns_cbranch_scc1 L_yload")

    lds_poll(a, 2, F_RED, 4, 4, 76)
    NG = 8
    vm = VM(a)
    vm.issue("other", 1)
    srd(a, R_A, P_WO, 2 << 20)
    a(f"""
    v_lshrrev_b32 v4, 3, v{LANE}
    v_and_b32 v5, 7, v{LANE}
    v_bfe_u32 v6, v{LANE}, 4, 2
    v_lshlrev_b32 v6, 1, v6
    v_xor_b32 v5, v5, v6
    v_lshlrev_b32 v5, 4, v5
    v_lshlrev_b32 v4, 11, v4
    v_add_u32 v1, v4, v5
    s_lshl_b32 s72, s{S_NT3}, 7
    s_lshl_b32 s73, s71, 17
    s_add_u32 s72, s72, s73
    s_lshl_b32 s73, s71, 13
    """)
    for g in range(NG):
        for i in range(8):
            p0 = g * 16 + i
            a(f"s_add_u32 m0, s73, {p0*1024}")
            a(f"s_add_u32 s74, s72, {p0*16384}")
            a(f"buffer_load_dwordx4 v1, {sr(R_A)}, s74 offen lds")
            vm.issue(("w", g))
    stamp(a, 6)
    for g in range(NG):
        vm.wait(("w", g))
        a("s_barrier")
    a("s_barrier")
    stamp(a, 7)
    stamp_flush(a)
    a("s_endpgm")

    a.label("L_yload")
    a(f"""
    v_lshrrev_b32 v8, 2, v{LANE}
    v_lshlrev_b32 v8, 7, v8
    v_and_b32 v9, 3, v{LANE}
    v_lshlrev_b32 v9, 2, v9
    v_add_u32 v8, v8, v9
    s_lshl_b32 s80, s{S_NT3}, 11
    s_add_u32 s80, s80, {WS_FL + 3*32768:#x}
    """)
    poll_lines(a, 8, 80, 4, 10, 72)
    a(f"""
    s_sub_u32 s71, s71, 2
    v_lshrrev_b32 v4, 4, v{LANE}
    v_and_b32 v5, 15, v{LANE}
    v_lshlrev_b32 v6, 12, v4
    v_lshlrev_b32 v5, 4, v5
    v_add_u32 v6, v6, v5
    v_lshlrev_b32 v7, 8, v4
    v_add_u32 v7, v7, v5
    s_lshl_b32 s72, s{S_NT3}, 18
    s_lshl_b32 s73, s{S_MT3}, 8
    s_add_u32 s72, s72, s73
    s_lshl_b32 s73, s71, 17
    s_add_u32 s72, s72, s73
    s_add_u32 s72, s72, {WS_YT:#x}
    s_lshl_b32 s73, s71, 13
    s_add_u32 s73, s73, {L_Y}
    v_add_u32 v7, s73, v7
    """)
    for i in range(8):
        a(f"s_add_u32 s74, s72, {i*16384}")
        a(f"buffer_load_dwordx4 {vr(16+4*i)}, v6, {sr(R_WS)}, s74 offen sc1")
    a("s_waitcnt vmcnt(0)")
    for i in range(8):
        a(f"ds_write_b128 v7, {vr(16+4*i)} offset:{i*1024}")
    a("s_waitcnt lgkmcnt(0)")
    stamp(a, 6)
    for g in range(NG + 1):
        a("s_barrier")
    stamp(a, 7)
    stamp_flush(a)
    a("s_endpgm")


def gen_compute(a, cfg):
    a.label("L_compute")
    Q = lambda dt, rt: 0 + 4 * (4 * dt + rt)
    K = lambda rt, dt: 32 + 4 * (2 * rt + dt)
    V = lambda rt, et: 64 + 4 * (2 * rt + et)
    FS = [96, 136]
    AB, AC = 176, 180
    BAR_AT = cfg.get("barat", 5)
    W1 = {0: [0, 8, 16], 1: [0], 2: [0, 8], 3: None}[cfg.get("w1", 0)]
    a(f"""
    s_and_b32 s71, s{S_WAVE}, 1
    s_lshr_b32 s72, s{S_WAVE}, 1
    v_and_b32 v1, 15, v{LANE}
    v_lshrrev_b32 v2, 4, v{LANE}
    v_lshrrev_b32 v3, 1, v1
    v_xor_b32 v3, v3, v2
    v_lshlrev_b32 v3, 4, v3
    s_lshl_b32 s73, s72, 13
    v_lshlrev_b32 v4, 7, v1
    v_add_u32 v4, s73, v4
    v_add_u32 v{AB}, v4, v3
    v_xor_b32 v{AB+1}, 64, v{AB}
    v_bfe_u32 v3, v{LANE}, 2, 2
    v_lshlrev_b32 v4, 3, v2
    v_add_u32 v4, v4, v3
    v_lshlrev_b32 v4, 7, v4
    v_lshrrev_b32 v3, 1, v3
    v_and_b32 v5, 1, v2
    v_lshlrev_b32 v5, 1, v5
    v_or_b32 v3, v3, v5
    v_lshlrev_b32 v3, 1, v3
    v_bfe_u32 v5, v{LANE}, 1, 1
    s_lshl_b32 s73, s71, 2
    v_or_b32 v5, s73, v5
    v_xor_b32 v3, v3, v5
    v_lshlrev_b32 v3, 4, v3
    v_add_u32 v4, v4, v3
    v_and_b32 v3, 1, v{LANE}
    v_lshlrev_b32 v3, 3, v3
    v_add_u32 v4, v4, v3
    v_add_u32 v{AB+2}, 16384, v4
    v_xor_b32 v{AB+3}, 32, v{AB+2}
    s_mov_b32 s74, {(NS-1)*SLOT}
    """)
    for i in range(4):
        a(f"v_add_u32 v{AC+i}, s74, v{AB+i}")
    for r in range(96):
        a(f"v_mov_b32 v{r}, 0")

    def reads(kk, fs):
        X = lambda rt: fs + 4 * rt
        W = lambda seg, ct: fs + 16 + 8 * seg + 4 * ct
        r = []
        for seg in range(3):
            for ct in range(2):
                for t in range(2):
                    r.append((f"ds_read_b64_tr_b16 {vr(W(seg,ct)+2*t,2)}, v{AC+2+ct} offset:{seg*8192+kk*4096+t*512}", ("w", seg, ct, t)))
            if seg == 0:
                for rt in range(4):
                    r.append((f"ds_read_b128 {vr(X(rt))}, v{AC+kk} offset:{rt*2048}", ("x", rt)))
        return r

    def mfmas(fs):
        X = lambda rt: fs + 4 * rt
        W = lambda seg, ct: fs + 16 + 8 * seg + 4 * ct
        m = []
        for rt in range(4):
            for dt in range(2):
                m.append((mfma(Q(dt, rt), W(0, dt), X(rt), vr(Q(dt, rt))), [("x", rt), ("w", 0, dt, 1)]))
        for rt in range(4):
            for dt in range(2):
                m.append((mfma(K(rt, dt), X(rt), W(1, dt), vr(K(rt, dt))), [("x", rt), ("w", 1, dt, 1)]))
        for rt in range(4):
            for et in range(2):
                m.append((mfma(V(rt, et), X(rt), W(2, et), vr(V(rt, et))), [("x", rt), ("w", 2, et, 1)]))
        return m

    stamp(a, 1)
    a("s_barrier")
    stamp(a, 2)
    for r, _ in reads(0, FS[0]):
        a(r)
    a("s_mov_b32 s75, 0")
    a.label("L_gemm1")
    tags = [t for _, t in reads(0, FS[0])]
    exp = cfg.get("exp", 0)
    if exp & 1:
        _reads = reads
        reads = lambda kk, fs: []
        tags = []
        _m = mfmas
        mfmas = lambda fs: [(t, []) for t, _ in _m(fs)]
    if exp & 2:
        _m2 = mfmas
        mfmas = lambda fs: [("s_nop 0", n) for _, n in _m2(fs)]
    weave(a, mfmas(FS[0]), tags, reads(1, FS[1]), waits=W1)
    upd = f"s_add_u32 s74, s74, {SLOT}\ns_cmp_eq_u32 s74, {NS*SLOT}\ns_cselect_b32 s74, 0, s74"
    hooks = {1: upd, BAR_AT: "s_waitcnt lgkmcnt(0)\ns_cmp_eq_u32 s75, 15\ns_cbranch_scc1 L_g1_nobar\ns_barrier\nL_g1_nobar:\n" + "\n".join(f"v_add_u32 v{AC+i}, s74, v{AB+i}" for i in range(4))}
    weave(a, mfmas(FS[1]), tags, reads(0, FS[0]), start=BAR_AT + 1, hooks=hooks, waits=W1)
    a("s_add_u32 s75, s75, 1\ns_cmp_lt_u32 s75, 16\ns_cbranch_scc1 L_gemm1")
    stamp(a, 3)

    TMP = 96
    PK = lambda p, dt: 128 + 4 * (2 * p + dt)
    PV = lambda p, et: 144 + 4 * (2 * p + et)
    ONES = 160
    KV = lambda dt, et: 164 + 4 * (2 * dt + et)
    ZZ = lambda dt: 180 + 4 * dt
    VL = 224
    VF = 230
    S_L2E, S_EPS = 76, 77
    a(f"""
    s_mov_b32 s{S_L2E}, {LOG2E:#x}
    s_mov_b32 s{S_EPS}, {EPS6:#x}
    v_lshlrev_b32 v{VL}, 4, v{LANE}
    v_mov_b32 v{VF}, {L_FLG}
    v_mov_b32 v{ONES}, 0x3f803f80
    v_mov_b32 v{ONES+1}, 0x3f803f80
    v_mov_b32 v{ONES+2}, 0x3f803f80
    v_mov_b32 v{ONES+3}, 0x3f803f80
    s_waitcnt lgkmcnt(0)
    ds_read_b32 v{VF+1}, v{VF} offset:{F_NONCE}
    s_nop 3
    """)
    phi(a, [K(rt, dt) + e for rt in range(4) for dt in range(2) for e in range(4)], TMP, S_L2E, S_EPS)
    for p in range(2):
        for dt in range(2):
            for hlf in range(2):
                src = K(2 * p + hlf, dt)
                a(f"v_cvt_pk_bf16_f32 v{PK(p,dt)+2*hlf}, v{src}, v{src+1}")
                a(f"v_cvt_pk_bf16_f32 v{PK(p,dt)+2*hlf+1}, v{src+2}, v{src+3}")
        for et in range(2):
            for hlf in range(2):
                src = V(2 * p + hlf, et)
                a(f"v_cvt_pk_bf16_f32 v{PV(p,et)+2*hlf}, v{src}, v{src+1}")
                a(f"v_cvt_pk_bf16_f32 v{PV(p,et)+2*hlf+1}, v{src+2}, v{src+3}")
    a(f"s_waitcnt lgkmcnt(0)\nv_readfirstlane_b32 s{S_NONCE}, v{VF+1}")
    for p in range(2):
        for dt in range(2):
            for et in range(2):
                a(mfma(KV(dt, et), PK(p, dt), PV(p, et), "0" if p == 0 else vr(KV(dt, et))))
            a(mfma(ZZ(dt), PK(p, dt), ONES, "0" if p == 0 else vr(ZZ(dt))))
    a(f"""
    s_lshl_b32 s78, s71, 12
    s_add_u32 s78, s78, {L_KVX}
    v_add_u32 v{VL+2}, s78, v{VL}
    v_lshrrev_b32 v{VL+3}, 4, v{LANE}
    v_lshlrev_b32 v{VL+3}, 4, v{VL+3}
    s_lshl_b32 s78, s71, 7
    s_add_u32 s78, s78, {L_ZX}
    v_add_u32 v{VL+4}, s78, v{VL+3}
    s_lshl_b32 s79, s71, 2
    v_add_u32 v{VL+5}, s79, v{VF}
    s_lshl_b32 s80, s{S_HP}, 1
    s_add_u32 s80, s80, s71
    s_cmp_eq_u32 s72, 0
    s_cbranch_scc1 L_kvlower
    """)
    for t in range(4):
        a(f"ds_write_b128 v{VL+2}, {vr(KV(t>>1,t&1))} offset:{t*1024}")
    for dt in range(2):
        a(f"ds_write_b128 v{VL+4}, {vr(ZZ(dt))} offset:{dt*64}")
    a(f"""
    v_mov_b32 v{TMP}, 1
    s_waitcnt lgkmcnt(0)
    ds_write_b32 v{VL+5}, v{TMP} offset:{F_KVX}
    s_branch L_kvdone
    """)
    a.label("L_kvlower")
    lds_poll(a, VL + 5, F_KVX, 1, TMP, 82)
    for t in range(4):
        a(f"ds_read_b128 {vr(TMP+4*t)}, v{VL+2} offset:{t*1024}")
    for dt in range(2):
        a(f"ds_read_b128 {vr(TMP+16+4*dt)}, v{VL+4} offset:{dt*64}")
    a(f"""
    s_lshl_b32 s81, s{S_MT}, 5
    s_add_u32 s81, s81, s80
    s_lshl_b32 s82, s81, 11
    s_add_u32 s82, s82, {WS_KVP:#x}
    s_lshl_b32 s83, s81, 7
    s_add_u32 s83, s83, {WS_ZP:#x}
    s_waitcnt lgkmcnt(0)
    """)
    for t in range(4):
        for e in range(4):
            a(f"v_add_f32 v{KV(t>>1,t&1)+e}, v{KV(t>>1,t&1)+e}, v{TMP+4*t+e}")
    for dt in range(2):
        for e in range(4):
            a(f"v_add_f32 v{ZZ(dt)+e}, v{ZZ(dt)+e}, v{TMP+16+4*dt+e}")
    for et in range(2):
        for dt in range(2):
            a(f"v_cvt_pk_bf16_f32 v{TMP+4*et+2*dt}, v{KV(dt,et)}, v{KV(dt,et)+1}")
            a(f"v_cvt_pk_bf16_f32 v{TMP+4*et+2*dt+1}, v{KV(dt,et)+2}, v{KV(dt,et)+3}")
        a(f"buffer_store_dwordx4 {vr(TMP+4*et)}, v{VL}, {sr(R_WS)}, s82 offen offset:{et*1024} sc1")
    a(f"""
    v_and_b32 v{TMP+24}, 15, v{LANE}
    v_cmp_eq_u32 vcc, 0, v{TMP+24}
    s_and_saveexec_b64 s[78:79], vcc
    """)
    for dt in range(2):
        a(f"buffer_store_dwordx4 {vr(ZZ(dt))}, v{VL+3}, {sr(R_WS)}, s83 offen offset:{dt*64} sc1")
    a("s_mov_b64 exec, s[78:79]\ns_waitcnt vmcnt(0)")
    flag_off(1, S_HP, S_MT, 82, a)
    a("s_lshl_b32 s83, s71, 2")
    signal(a, 82, ("83", ), TMP)
    a.label("L_kvdone")
    stamp(a, 4)

    PQ = lambda rt: 32 + 4 * rt
    phi(a, [Q(dt, rt) + e for dt in range(2) for rt in range(4) for e in range(4)], TMP, S_L2E, S_EPS)
    for rt in range(4):
        for dt in range(2):
            a(f"v_cvt_pk_bf16_f32 v{PQ(rt)+2*dt}, v{Q(dt,rt)}, v{Q(dt,rt)+1}")
            a(f"v_cvt_pk_bf16_f32 v{PQ(rt)+2*dt+1}, v{Q(dt,rt)+2}, v{Q(dt,rt)+3}")
    VP = 232
    a(f"""
    v_lshrrev_b32 v{VP}, 2, v{LANE}
    v_lshlrev_b32 v{VP}, 7, v{VP}
    v_and_b32 v{VP+1}, 3, v{LANE}
    v_lshlrev_b32 v{VP+1}, 2, v{VP+1}
    v_add_u32 v{VP}, v{VP}, v{VP+1}
    s_lshl_b32 s78, s{S_HQ}, 11
    s_add_u32 s78, s78, {WS_FL + 32768:#x}
    """)
    poll_lines(a, VP, 78, 2, VP + 2, 80)
    stamp(a, 5)
    PART = 96
    SUM = 160
    a(f"""
    s_lshl_b32 s78, s{S_HQ}, 1
    s_add_u32 s78, s78, s71
    s_lshl_b32 s79, s78, 11
    s_lshl_b32 s80, s72, 10
    s_add_u32 s79, s79, s80
    s_add_u32 s79, s79, {WS_KVP:#x}
    v_and_b32 v48, 15, v{LANE}
    v_lshlrev_b32 v48, 12, v48
    v_lshrrev_b32 v49, 4, v{LANE}
    v_lshlrev_b32 v49, 4, v49
    v_add_u32 v48, v48, v49
    s_lshl_b32 s80, s78, 7
    s_add_u32 s80, s80, {WS_ZP:#x}
    buffer_load_dwordx4 v[52:55], v48, {sr(R_WS)}, s80 offen sc1
    buffer_load_dwordx4 v[56:59], v48, {sr(R_WS)}, s80 offen offset:64 sc1
    """)
    for p in range(16):
        a(f"s_add_u32 s81, s79, {p*32*2048}")
        a(f"buffer_load_dwordx4 {vr(PART+4*p)}, v{VL}, {sr(R_WS)}, s81 offen sc1")
    for e in range(8):
        a(f"v_mov_b32 v{SUM+e}, 0")
    a("s_mov_b32 s82, 0x3f80\ns_mov_b32 s83, 0x3f800000")
    a("s_waitcnt vmcnt(16)")
    for ctl in ("row_ror:8", "row_ror:4", "row_ror:2", "row_ror:1"):
        for e in range(8):
            a(f"v_add_f32_dpp v{52+e}, v{52+e}, v{52+e} {ctl} row_mask:0xf bank_mask:0xf")
    ZF = 60
    for i in range(4):
        a(f"v_cvt_pk_bf16_f32 v{ZF+i}, v{52+2*i}, v{52+2*i+1}")
    for p in range(16):
        if p % 2 == 0:
            a(f"s_waitcnt vmcnt({14-p})")
        for i in range(4):
            a(f"v_dot2_f32_bf16 v{SUM+2*i}, v{PART+4*p+i}, s82, v{SUM+2*i}")
            a(f"v_dot2_f32_bf16 v{SUM+2*i+1}, v{PART+4*p+i}, s83, v{SUM+2*i+1}")
    a(f"v_mov_b32 v72, 1\ns_mov_b64 exec, 1\nds_add_u32 v{VF}, v72 offset:{F_RED}\ns_mov_b64 exec, -1\ns_nop 1")
    KF = [64, 68]
    for i in range(4):
        a(f"v_cvt_pk_bf16_f32 v{64+i}, v{SUM+2*i}, v{SUM+2*i+1}")
    a(f"""
    s_lshl_b32 s78, s71, 11
    s_lshl_b32 s79, s72, 10
    s_add_u32 s78, s78, {L_OX}
    s_add_u32 s80, s78, s79
    s_xor_b32 s79, s79, 1024
    s_add_u32 s81, s78, s79
    v_add_u32 v50, s80, v{VL}
    v_add_u32 v51, s81, v{VL}
    ds_write_b128 v50, v[64:67]
    s_lshl_b32 s78, s{S_WAVE}, 2
    s_xor_b32 s79, s78, 8
    v_add_u32 v48, s78, v{VF}
    v_add_u32 v49, s79, v{VF}
    v_mov_b32 v72, 1
    s_waitcnt lgkmcnt(0)
    ds_write_b32 v48, v72 offset:{F_OX}
    """)
    lds_poll(a, 49, F_OX, 1, 72, 82)
    a("ds_read_b128 v[68:71], v51\ns_waitcnt lgkmcnt(0)")
    a(f"""
    s_cmp_eq_u32 s72, 0
    s_cbranch_scc1 L_noswap
    v_swap_b32 v64, v68
    v_swap_b32 v65, v69
    v_swap_b32 v66, v70
    v_swap_b32 v67, v71
    """)
    a.label("L_noswap")
    NUM = lambda et, rt: 96 + 4 * (4 * et + rt)
    DEN = lambda rt: 128 + 4 * rt
    a("s_nop 1")
    for rt in range(4):
        for et in range(2):
            a(mfma(NUM(et, rt), KF[et], PQ(rt), "0"))
        a(mfma(DEN(rt), ZF, PQ(rt), "0"))
    a(f"""
    s_lshl_b32 s78, s{S_MT}, 3
    s_lshl_b32 s79, s72, 2
    s_add_u32 s78, s78, s79
    s_lshl_b32 s78, s78, 5
    s_lshl_b32 s79, s{S_HQ}, 1
    s_add_u32 s78, s78, s79
    s_add_u32 s78, s78, s71
    s_lshl_b32 s78, s78, 10
    s_add_u32 s78, s78, {WS_O:#x}
    s_nop 1
    """)
    for rt in range(4):
        a(f"v_add_f32 v{DEN(rt)}, s{S_EPS}, v{DEN(rt)}")
    for rt in range(4):
        a(f"v_rcp_f32 v{DEN(rt)}, v{DEN(rt)}")
    OF = lambda rt: 144 + 4 * rt
    for rt in range(4):
        for et in range(2):
            for e in range(4):
                a(f"v_mul_f32 v{NUM(et,rt)+e}, v{NUM(et,rt)+e}, v{DEN(rt)}")
        for et in range(2):
            a(f"v_cvt_pk_bf16_f32 v{OF(rt)+2*et}, v{NUM(et,rt)}, v{NUM(et,rt)+1}")
            a(f"v_cvt_pk_bf16_f32 v{OF(rt)+2*et+1}, v{NUM(et,rt)+2}, v{NUM(et,rt)+3}")
        a(f"s_add_u32 s79, s78, {rt*32768}")
        a(f"buffer_store_dwordx4 {vr(OF(rt))}, v{VL}, {sr(R_WS)}, s79 offen sc1")
    a("s_waitcnt vmcnt(0)")
    flag_off(2, S_MT, S_HQ, 82, a)
    a(f"s_lshl_b32 s83, s{S_WAVE}, 2")
    signal(a, 82, ("83", ), TMP)
    stamp(a, 6)

    vm = VM(a)
    srd(a, R_A, P_X, 4 << 20)
    srd(a, R_B, P_OUT, 4 << 20)
    ACC = lambda nt, st: 4 * (2 * nt + st)
    OR = 32
    PD = 6
    WF = [80, 96]
    XR = 112
    GR = 128
    WA = 132
    VX = 136
    a(f"""
    v_and_b32 v1, 15, v{LANE}
    v_lshrrev_b32 v2, 4, v{LANE}
    s_lshl_b32 s73, s{S_MT3}, 7
    s_lshl_b32 s74, s{S_WAVE}, 5
    s_add_u32 s73, s73, s74
    v_add_u32 v3, s73, v1
    v_lshlrev_b32 v4, 11, v3
    v_lshlrev_b32 v5, 4, v2
    v_add_u32 v4, v4, v5
    s_lshl_b32 s74, s{S_NT3}, 7
    v_add_u32 v{VX}, s74, v4
    v_add_u32 v{VX+1}, 0x8000, v{VX}
    v_lshlrev_b32 v3, 2, v3
    s_mov_b32 s75, {WS_G:#x}
    """)
    for st in range(2):
        for ntp in range(2):
            a(f"buffer_load_dwordx4 {vr(XR+8*st+4*ntp)}, v{VX+st}, {sr(R_A)}, 0 offen offset:{64*ntp}")
    a(f"buffer_load_dword v{GR}, v3, {sr(R_WS)}, s75 offen sc1")
    a(f"buffer_load_dword v{GR+1}, v3, {sr(R_WS)}, s75 offen offset:64 sc1")
    a(f"""
    v_bfe_u32 v3, v{LANE}, 2, 2
    v_lshlrev_b32 v4, 2, v2
    v_add_u32 v4, v4, v3
    v_lshlrev_b32 v5, 7, v4
    v_lshrrev_b32 v4, 1, v4
    v_and_b32 v4, 3, v4
    v_lshlrev_b32 v4, 1, v4
    v_bfe_u32 v6, v{LANE}, 1, 1
    v_and_b32 v7, 1, v{LANE}
    v_lshlrev_b32 v7, 3, v7
    v_add_u32 v5, v5, v7
    """)
    for nt in range(4):
        a(f"v_or_b32 v7, {2*nt}, v6")
        a("v_xor_b32 v7, v7, v4")
        a("v_lshlrev_b32 v7, 4, v7")
        a(f"v_add_u32 v{WA+nt}, v5, v7")
    a(f"""
    s_lshl_b32 s78, s{S_MT3}, 11
    s_add_u32 s78, s78, {WS_FL + 2*32768:#x}
    """)
    poll_lines(a, VP, 78, 4, VP + 2, 80)
    stamp(a, 7)
    a(f"""
    s_lshl_b32 s73, s{S_MT3}, 3
    s_lshl_b32 s74, s{S_WAVE}, 1
    s_add_u32 s73, s73, s74
    s_lshl_b32 s73, s73, 15
    s_add_u32 s73, s73, {WS_O:#x}
    s_add_u32 s74, s73, 32768
    """)

    def oload(h):
        for st in range(2):
            a(f"s_add_u32 s75, s{73+st}, {(h//4)*4096}")
            a(f"buffer_load_dwordx4 {vr(OR+8*(h%PD)+4*st)}, v{VL}, {sr(R_WS)}, s75 offen offset:{(h%4)*1024} sc1")
            vm.issue(("o", h))

    def wreads(h, s):
        off = (h % 16) * 4096
        r = []
        for nt in range(4):
            for t in range(2):
                r.append(f"ds_read_b64_tr_b16 {vr(WF[s]+4*nt+2*t,2)}, v{WA+nt} offset:{off+t*2048}")
        return r

    for h in range(PD):
        oload(h)
    a("s_barrier")
    stamp(a, 8)
    for x in wreads(0, 0):
        a(x)
    for h in range(32):
        s = h & 1
        vm.wait(("o", h))
        boundary = (h + 1) % 4 == 0 and h < 31
        nxt = wreads(h + 1, s ^ 1) if h < 31 else []
        a("s_waitcnt lgkmcnt(0)")
        if boundary:
            a("s_barrier")
        if h == 15:
            for nt in range(4):
                a(f"v_add_u32 v{WA+nt}, 65536, v{WA+nt}")
        k = 0
        for nt in range(4):
            for st in range(2):
                c = "0" if h == 0 else vr(ACC(nt, st))
                a(mfma(ACC(nt, st), WF[s] + 4 * nt, OR + 8 * (h % PD) + 4 * st, c))
                if k < len(nxt):
                    a(nxt[k]); k += 1
        if h + PD < 32:
            oload(h + PD)
    stamp(a, 9)
    YR = 32
    a(f"""
    s_barrier
    v_bfe_u32 v64, v{LANE}, 2, 2
    v_lshrrev_b32 v65, 4, v{LANE}
    v_lshlrev_b32 v65, 2, v65
    v_add_u32 v64, v64, v65
    v_lshlrev_b32 v64, 8, v64
    v_and_b32 v65, 3, v{LANE}
    v_lshlrev_b32 v65, 3, v65
    v_add_u32 v64, v64, v65
    s_lshl_b32 s73, s{S_WAVE}, 6
    s_add_u32 s73, s73, {L_Y}
    v_add_u32 v64, s73, v64
    """)
    for nt in range(4):
        for st in range(2):
            a(f"ds_read_b64_tr_b16 {vr(YR+4*nt+2*st,2)}, v64 offset:{nt*4096+st*32}")
    for st in range(2):
        for ntp in range(2):
            b = XR + 8 * st + 4 * ntp
            a(f"v_permlane16_swap_b32 v{b}, v{b+2}")
            a(f"v_permlane16_swap_b32 v{b+1}, v{b+3}")
    a("s_nop 0")
    for st in range(2):
        for ntp in range(2):
            b = XR + 8 * st + 4 * ntp
            a(f"v_permlane32_swap_b32 v{b}, v{b+2}")
            a(f"v_permlane32_swap_b32 v{b+1}, v{b+3}")
    for st in range(2):
        a(f"v_sub_f32 v{GR+2+st}, 1.0, v{GR+st}")
    a("s_waitcnt lgkmcnt(0)")
    T = 66
    OUT = 80
    for st in range(2):
        for nt in range(4):
            ntp, odd = nt >> 1, nt & 1
            xr = XR + 8 * st + 4 * ntp + 2 * odd
            yr = YR + 4 * nt + 2 * st
            ac = ACC(nt, st)
            unpack(a, T, xr, 0); unpack(a, T + 1, xr, 1); unpack(a, T + 2, xr + 1, 0); unpack(a, T + 3, xr + 1, 1)
            unpack(a, T + 4, yr, 0); unpack(a, T + 5, yr, 1); unpack(a, T + 6, yr + 1, 0); unpack(a, T + 7, yr + 1, 1)
            for e in range(4):
                a(f"v_mul_f32 v{T+e}, v{T+e}, v{T+4+e}")
            for e in range(4):
                a(f"v_mul_f32 v{T+e}, v{T+e}, v{GR+2+st}")
            for e in range(4):
                a(f"v_fmac_f32 v{T+e}, v{ac+e}, v{GR+st}")
            o = OUT + 8 * st + 4 * ntp + 2 * odd
            a(f"v_cvt_pk_bf16_f32 v{o}, v{T}, v{T+1}")
            a(f"v_cvt_pk_bf16_f32 v{o+1}, v{T+2}, v{T+3}")
    a("s_nop 1")
    for st in range(2):
        for ntp in range(2):
            b = OUT + 8 * st + 4 * ntp
            a(f"v_permlane32_swap_b32 v{b}, v{b+2}")
            a(f"v_permlane32_swap_b32 v{b+1}, v{b+3}")
    a("s_nop 0")
    for st in range(2):
        for ntp in range(2):
            b = OUT + 8 * st + 4 * ntp
            a(f"v_permlane16_swap_b32 v{b}, v{b+2}")
            a(f"v_permlane16_swap_b32 v{b+1}, v{b+3}")
    for st in range(2):
        for ntp in range(2):
            a(f"buffer_store_dwordx4 {vr(OUT+8*st+4*ntp)}, v{VX+st}, {sr(R_B)}, 0 offen offset:{64*ntp}")
    stamp(a, 10)
    stamp_flush(a)
    a.label("L_end")
    a("s_endpgm")


HEADER = f"""; gated_mix: g * linear_attention(x) + (1 - g) * x * h3_conv(k, v) in one persistent launch.
; @launch grid=(256,1,1) block=(512,1,1) lds={LDS_BYTES}
.amdgcn_target "amdgcn-amd-amdhsa--gfx950"
.text
.globl {KNAME}
.p2align 8
.type {KNAME},@function
{KNAME}:
"""

DESC = f""".section .rodata,"a"
.p2align 6
.amdhsa_kernel {KNAME}
  .amdhsa_next_free_vgpr 256
  .amdhsa_next_free_sgpr 102
  .amdhsa_accum_offset 256
  .amdhsa_group_segment_fixed_size 0
  .amdhsa_kernarg_size 104
  .amdhsa_user_sgpr_count 2
  .amdhsa_user_sgpr_kernarg_segment_ptr 1
  .amdhsa_system_sgpr_workgroup_id_x 1
  .amdhsa_float_denorm_mode_32 3
.end_amdhsa_kernel
"""


def generate(cfg=None):
    global STAMPS
    cfg = cfg or {}
    STAMPS = cfg.get("stamps", 0)
    a = Asm()
    gen_prologue(a, cfg)
    gen_loader(a, cfg)
    gen_prepass(a, cfg)
    gen_conv(a, cfg)
    gen_compute(a, cfg)
    return HEADER + a.text() + DESC


if __name__ == "__main__":
    cfg = {}
    out = f"cdna_kernels/{NAME}.s"
    for arg in sys.argv[1:]:
        if arg.startswith("-o"):
            out = arg[2:]
        else:
            k, v = arg.split("=")
            cfg[k] = int(v)
    open(out, "w").write(generate(cfg))
    print("wrote", out)
```

```python
import sys

NAME = "gated_mix__linear_attn_block__ssm_conv_h3__prompt"
KNAME = NAME + "_kernel"

WS_O = 0
WS_UT = 4 << 20
WS_YT = 8 << 20
WS_KVP = 12 << 20
WS_ZP = 14 << 20
WS_G = (14 << 20) + (1 << 19)
WS_FL = 15 << 20
WS_SIZE = 32 << 20
WS_TS = 24 << 20

SLOT = 40960
NS = 4
L_U = 122880
U_CH = 4608
COPY = 4160
H_CH = 4 * COPY
L_Y = 131072
L_X = 147456
L_KVX = L_X
L_ZX = L_X + 8192
L_OX = L_X + 8448
L_FLG = L_X + 12544
LDS_BYTES = 163840
F_KVX, F_OX, F_CONV, F_U, F_RED, F_NONCE = 0, 8, 24, 28, 32, 48

LOG2E = 0x3FB8AA3B
EPS6 = 0x358637BD
SPIN_MAX = 200000

P_X, P_WQKV, P_WO, P_K, P_V, P_SK, P_H = 16, 18, 20, 24, 26, 28, 30
P_D, P_GW, P_OUT, P_DBG, P_WS = 32, 34, 36, 38, 40
R_WS = 44
R_A, R_B, R_C, R_D = 48, 52, 56, 60
S_WAVE, S_MT, S_HP, S_ROT, S_NONCE = 64, 65, 66, 67, 68
S_MT3, S_NT3 = 69, 70
S_URDY = 42
S_HQ = 43
LANE = 250

STAMPS = 0
CUR_ROLE = ['']
BARTL = [0]


class Asm:
    def __init__(self):
        self.lines = []
        self.nlab = 0

    def __call__(self, s):
        for ln in s.split("\n"):
            ln = ln.strip()
            if ln:
                self.lines.append(ln if ln.endswith(":") else "  " + ln)

    def label(self, s):
        self.lines.append(s + ":")

    def raw(self, s):
        self.lines.append(s)

    def newlab(self, p):
        self.nlab += 1
        return f"{p}_{self.nlab}"

    def text(self):
        return "\n".join(self.lines) + "\n"


class VM:
    def __init__(self, a):
        self.a = a
        self.q = []

    def issue(self, tag, n=1):
        self.q += [tag] * n

    def wait(self, tag):
        if tag not in self.q:
            return
        idx = max(i for i, t in enumerate(self.q) if t == tag)
        n = len(self.q) - 1 - idx
        self.a(f"s_waitcnt vmcnt({min(n, 63)})")
        self.q = self.q[idx + 1:]

    def drain(self):
        self.a("s_waitcnt vmcnt(0)")
        self.q = []


def vr(b, n=4):
    return f"v[{b}:{b+n-1}]"


def sr(b, n=4):
    return f"s[{b}:{b+n-1}]"


def srd(a, dst, src, size):
    a(f"s_mov_b32 s{dst}, s{src}")
    a(f"s_and_b32 s{dst+1}, s{src+1}, 0xffff")
    a(f"s_mov_b32 s{dst+2}, {size:#x}")
    a(f"s_mov_b32 s{dst+3}, 0x20000")


NOSTAMP = set()


def stamp(a, idx):
    if STAMPS and (idx, CUR_ROLE[0]) not in NOSTAMP and not (CUR_ROLE[0] == "ld" and BARTL[0] and idx > 0):
        a("s_memtime s[100:101]" if STAMPS == 2 else "s_memrealtime s[100:101]")
        a("s_waitcnt lgkmcnt(0)")
        a(f"s_mov_b32 s{84+idx}, s100")


def stamp_flush(a):
    if STAMPS:
        a("s_mov_b64 exec, 1")
        a(f"s_lshl_b32 s98, s2, 3\ns_add_u32 s98, s98, s{S_WAVE}\ns_lshl_b32 s98, s98, 6\ns_add_u32 s98, s98, {WS_TS:#x}")
        for i in range(14):
            a(f"v_mov_b32 v{232+i}, s{84+i}")
        a("v_mov_b32 v231, 0")
        for j in range(4):
            a(f"buffer_store_dwordx4 {vr(232+4*j)}, v231, {sr(R_WS)}, s98 offen offset:{16*j}")


FAST_PAIRS = [p for p in range(16) if p & 3 != 3]
SLOW_PAIRS = [p for p in range(16) if p & 3 == 3]
HEAD_ORDER = [2 * p + i for p in FAST_PAIRS + SLOW_PAIRS for i in range(2)]


def mfma(d, x, y, c):
    return f"v_mfma_f32_16x16x32_bf16 {vr(d)}, {vr(x)}, {vr(y)}, {c}"


def unpack(a, dst, src, half):
    if half == 0:
        a(f"v_lshlrev_b32 v{dst}, 16, v{src}")
    else:
        a(f"v_and_b32 v{dst}, 0xffff0000, v{src}")


def weave(a, mf, cur_tags, nxt, start=0, hooks=None, waits=None):
    queue = list(cur_tags)
    waits = sorted(waits) if waits is not None else list(range(len(mf)))
    done = -1
    k = 0
    for i, (txt, need) in enumerate(mf):
        if i in waits:
            nxtw = min([w for w in waits if w > i], default=len(mf))
            needs = [t for _, nd in mf[i:nxtw] for t in nd]
            last = max([cur_tags.index(t) for t in needs], default=-1)
            if last > done:
                n = len(queue) - 1 - last
                a(f"s_waitcnt lgkmcnt({min(n, 15)})")
                done = last if n <= 15 else len(queue) - 1 - 15
        a(txt)
        if hooks and i in hooks:
            a(hooks[i])
            if "lgkmcnt(0)" in hooks[i]:
                done = len(queue) - 1
        if i >= start and k < len(nxt):
            a(nxt[k][0])
            queue.append(("n", k))
            k += 1
    assert k == len(nxt)


def phi(a, regs, tmp, s_l2e, s_eps):
    n = len(regs)
    for i in range(n):
        a(f"v_mul_f32 v{tmp+i}, s{s_l2e}, v{regs[i]}")
    for i in range(n):
        a(f"v_exp_f32 v{tmp+i}, v{tmp+i} clamp")
    for i in range(n):
        a(f"v_add_f32 v{regs[i]}, 1.0, v{regs[i]}")
    for i in range(n):
        a(f"v_max_f32 v{regs[i]}, v{regs[i]}, v{tmp+i}")
    for i in range(n):
        a(f"v_add_f32 v{regs[i]}, s{s_eps}, v{regs[i]}")


def flag_off(typ, s_group, s_prod, dst, a):
    a(f"s_lshl_b32 s{dst}, s{s_group}, 4")
    a(f"s_add_u32 s{dst}, s{dst}, s{s_prod}")
    a(f"s_lshl_b32 s{dst}, s{dst}, 8")
    a(f"s_add_u32 s{dst}, s{dst}, {WS_FL + typ*65536:#x}")


def signal(a, s_off, idx_bytes, vt):
    a(f"v_mov_b32 v{vt}, s{S_NONCE}")
    a(f"v_mov_b32 v{vt+1}, {idx_bytes}" if isinstance(idx_bytes, int) else f"v_mov_b32 v{vt+1}, s{idx_bytes[0]}")
    a("s_mov_b64 exec, 1")
    a(f"buffer_store_dword v{vt}, v{vt+1}, {sr(R_WS)}, s{s_off} offen sc1")
    a("s_mov_b64 exec, -1")


def poll_lines(a, v_off, s_base, nd, vt, st, prods=range(16)):
    lab = a.newlab("L_poll")
    done = a.newlab("L_pdone")
    mask = sum(((1 << nd) - 1) << (4 * i) for i in prods)
    a(f"s_mov_b32 s{st}, {mask & 0xffffffff:#x}")
    a(f"s_mov_b32 s{st+1}, {mask >> 32:#x}")
    a(f"s_mov_b32 s{st+2}, 0")
    a.label(lab)
    a(f"buffer_load_dword v{vt}, v{v_off}, {sr(R_WS)}, s{s_base} offen sc1")
    a("s_waitcnt vmcnt(0)")
    a(f"v_cmp_eq_u32 vcc, s{S_NONCE}, v{vt}")
    a(f"s_add_u32 s{st+2}, s{st+2}, 1")
    a(f"s_and_b64 vcc, vcc, s[{st}:{st+1}]")
    a(f"s_cmp_eq_u64 vcc, s[{st}:{st+1}]")
    a(f"s_cbranch_scc1 {done}")
    a(f"s_cmp_lt_u32 s{st+2}, {SPIN_MAX}")
    a(f"s_cbranch_scc1 {lab}")
    a.label(done)


def lds_poll(a, v_addr, off, target, vt, st):
    lab = a.newlab("L_lp")
    done = a.newlab("L_lpd")
    a(f"s_mov_b32 s{st+1}, 0")
    a.label(lab)
    a(f"ds_read_b32 v{vt}, v{v_addr} offset:{off}")
    a("s_waitcnt lgkmcnt(0)")
    a(f"v_readfirstlane_b32 s{st}, v{vt}")
    a(f"s_add_u32 s{st+1}, s{st+1}, 1")
    a(f"s_cmp_ge_u32 s{st}, {target}")
    a(f"s_cbranch_scc1 {done}")
    a(f"s_cmp_lt_u32 s{st+1}, {SPIN_MAX*16}")
    a(f"s_cbranch_scc1 {lab}")
    a.label(done)


def gen_prologue(a, cfg):
    if cfg.get("map", 0) == 0:
        MAPA, MAPB = "s_and_b32 s74, s73, 7", "s_lshr_b32 s74, s73, 3"
    else:
        MAPA, MAPB = "s_lshr_b32 s74, s73, 2", "s_and_b32 s74, s73, 3"
    a(f"""
    s_cmp_ge_u32 s2, 256
    s_cbranch_scc1 L_end
    s_load_dwordx16 s[16:31], s[0:1], 0
    s_load_dwordx8 s[32:39], s[0:1], 64
    s_load_dwordx2 s[40:41], s[0:1], 96
    v_lshrrev_b32 v1, 6, v0
    v_and_b32 v{LANE}, 63, v0
    s_and_b32 s72, s2, 7
    v_readfirstlane_b32 s{S_WAVE}, v1
    s_lshr_b32 s73, s2, 3
    s_and_b32 s{S_MT}, s72, 1
    s_lshl_b32 s{S_MT}, s{S_MT}, 3
    {MAPA}
    s_add_u32 s{S_MT}, s{S_MT}, s74
    s_lshr_b32 s{S_HP}, s72, 1
    s_lshl_b32 s{S_HP}, s{S_HP}, 2
    {MAPB}
    s_add_u32 s{S_HP}, s{S_HP}, s74
    s_and_b32 s{S_MT3}, s72, 3
    s_lshl_b32 s{S_MT3}, s{S_MT3}, 2
    s_and_b32 s74, s73, 3
    s_add_u32 s{S_MT3}, s{S_MT3}, s74
    s_lshr_b32 s{S_NT3}, s72, 2
    s_lshl_b32 s{S_NT3}, s{S_NT3}, 3
    s_lshr_b32 s74, s73, 2
    s_add_u32 s{S_NT3}, s{S_NT3}, s74
    """)
    a(f"s_add_u32 s{S_HQ}, s{S_HP}, {cfg.get('hq', 4)}\ns_and_b32 s{S_HQ}, s{S_HQ}, 15")
    rot = cfg.get("rot", 2)
    if rot == 0:
        a(f"s_mov_b32 s{S_ROT}, 0")
    elif rot == 1:
        a(f"s_lshl_b32 s{S_ROT}, s72, 1")
    elif rot == 2:
        a(f"s_add_u32 s{S_ROT}, s{S_MT}, s{S_HP}\ns_and_b32 s{S_ROT}, s{S_ROT}, 15")
    elif rot == 3:
        a(f"s_lshl_b32 s{S_ROT}, s{S_HP}, 1\ns_add_u32 s{S_ROT}, s{S_ROT}, s{S_MT}\ns_lshl_b32 s{S_ROT}, s{S_ROT}, 1\ns_and_b32 s{S_ROT}, s{S_ROT}, 15")
    elif rot == 4:
        a(f"s_lshl_b32 s{S_ROT}, s{S_HP}, 1\ns_add_u32 s{S_ROT}, s{S_ROT}, s{S_MT}\ns_lshl_b32 s{S_ROT}, s{S_ROT}, 1\ns_lshr_b32 s74, s{S_MT}, 3\ns_add_u32 s{S_ROT}, s{S_ROT}, s74\ns_and_b32 s{S_ROT}, s{S_ROT}, 15")
    if STAMPS:
        for i in range(14):
            a(f"s_mov_b32 s{84+i}, 0")
    a("s_waitcnt lgkmcnt(0)")
    srd(a, R_WS, P_WS, WS_SIZE)
    stamp(a, 0)
    a(f"""
    s_cmp_lt_u32 s{S_WAVE}, 4
    s_cbranch_scc1 L_compute
    s_cmp_ge_u32 s{S_WAVE}, 6
    s_cbranch_scc1 L_prepass
    """)


def gen_loader(a, cfg):
    srd(a, R_A, P_X, 4 << 20)
    srd(a, R_B, P_WQKV, 6 << 20)
    XG, WG = 1, 3
    a(f"""
    s_sub_u32 s71, s{S_WAVE}, 4
    v_lshrrev_b32 v5, 3, v{LANE}
    v_and_b32 v6, 7, v{LANE}
    v_lshrrev_b32 v7, 4, v{LANE}
    v_xor_b32 v8, v6, v7
    v_lshlrev_b32 v8, 4, v8
    v_lshlrev_b32 v9, 11, v5
    v_add_u32 v{XG}, v8, v9
    v_xor_b32 v{XG+1}, 64, v{XG}
    v_and_b32 v7, 1, v7
    v_lshlrev_b32 v7, 1, v7
    v_xor_b32 v8, v6, v7
    v_lshlrev_b32 v8, 4, v8
    v_mul_u32_u24 v9, 6144, v5
    v_add_u32 v{WG}, v8, v9
    v_xor_b32 v{WG+1}, 64, v{WG}
    s_lshl_b32 s72, s{S_MT}, 18
    s_lshl_b32 s73, s71, 17
    s_add_u32 s72, s72, s73
    s_lshl_b32 s73, s71, 13
    s_lshl_b32 s74, s71, 12
    s_add_u32 s74, s74, 16384
    s_lshl_b32 s75, s{S_HP}, 7
    s_mul_i32 s76, s71, 196608
    s_add_u32 s75, s75, s76
    s_lshl_b32 s4, s{S_HQ}, 7
    s_add_u32 s4, s4, s76
    """)
    first_slot = NS - 1

    def issue():
        a(f"""
        s_add_u32 s78, s{S_ROT}, s76
        s_and_b32 s78, s78, 15
        s_lshl_b32 s79, s78, 7
        s_add_u32 s79, s79, s72
        s_mul_i32 s80, s78, 393216
        s_add_u32 s5, s80, s4
        s_add_u32 s80, s80, s75
        s_add_u32 s81, s77, s73
        s_add_u32 s82, s77, s74
        """)
        for i in range(8):
            a(f"s_add_u32 m0, s81, {i*1024}")
            a(f"s_add_u32 s83, s79, {i*16384}")
            a(f"buffer_load_dwordx4 v{XG + (i & 1)}, {sr(R_A)}, s83 offen lds")
        for seg in range(3):
            for i in range(4):
                a(f"s_add_u32 m0, s82, {seg*8192 + i*1024}")
                a(f"s_add_u32 s83, {'s5' if seg == 0 else 's80'}, {seg*2048 + i*49152}")
                a(f"buffer_load_dwordx4 v{WG + (i & 1)}, {sr(R_B)}, s83 offen lds")
        a(f"""
        s_add_u32 s76, s76, 1
        s_add_u32 s77, s77, {SLOT}
        s_cmp_eq_u32 s77, {NS*SLOT}
        s_cselect_b32 s77, 0, s77
        """)

    a(f"s_mov_b32 s76, 0\ns_mov_b32 s77, {first_slot*SLOT}")
    stamp(a, 1)
    prof = 0
    a.label("L_ld_loop")
    issue()
    a("""
    s_cmp_lt_u32 s76, 2
    s_cbranch_scc1 L_ld_loop
    s_cmp_eq_u32 s76, 3
    s_cbranch_scc1 L_ld_loop
    s_cmp_eq_u32 s76, 16
    s_cbranch_scc1 L_ld_done
    s_cmp_eq_u32 s76, 2
    s_cbranch_scc1 L_ld_first
    s_waitcnt vmcnt(40)
    s_barrier
    """)
    if cfg.get("bartl", 0):
        a("s_memrealtime s[100:101]\ns_waitcnt lgkmcnt(0)")
        for b in range(1, 13):
            a(f"s_cmp_eq_u32 s76, {b+3}\ns_cselect_b32 s{84+b}, s100, s{84+b}")
    a("""
    s_branch L_ld_loop
    L_ld_first:
    s_waitcnt vmcnt(20)
    s_barrier
    """)
    if cfg.get("ldtl", 0): stamp(a, 8)
    a("s_branch L_ld_loop")
    a.label("L_ld_done")
    if cfg.get("ldtl", 0): stamp(a, 10)
    a("s_waitcnt vmcnt(40)\ns_barrier")
    if cfg.get("ldtl", 0): stamp(a, 11)
    nh = h_loads(a)
    if cfg.get("wopf", 1):
        srd(a, R_A, P_WO, 2 << 20)
        a(f"""
        s_and_b32 s4, s{S_MT3}, 3
        s_lshl_b32 s4, s4, 1
        s_add_u32 s4, s4, s71
        s_lshl_b32 s4, s4, 18
        s_lshl_b32 s5, s{S_NT3}, 7
        s_add_u32 s4, s4, s5
        s_add_u32 s5, s4, {64*2048}
        v_lshlrev_b32 v77, 11, v{LANE}
        buffer_load_dword v78, v77, {sr(R_A)}, s4 offen
        buffer_load_dword v79, v77, {sr(R_A)}, s5 offen
        """)
        nh += 2
    a(f"s_waitcnt vmcnt({20+nh})\ns_barrier")
    if cfg.get("ldtl", 0): stamp(a, 12)
    a(f"s_waitcnt vmcnt({nh})\ns_barrier")
    if cfg.get("ldtl", 0): stamp(a, 13)
    stamp(a, 2)
    a("s_branch L_conv")


HD, HE, HFX, HDV = 48, 64, 72, 73


def h_loads(a):
    srd(a, R_C, P_H, 4 << 20)
    srd(a, R_D, P_D, 2048)
    a(f"""
    s_lshl_b32 s4, s2, 2
    s_add_u32 s4, s4, s{S_WAVE}
    s_sub_u32 s4, s4, 4
    s_lshl_b32 s5, s4, 12
    s_lshl_b32 s6, s4, 1
    v_lshlrev_b32 v74, 4, v{LANE}
    v_lshrrev_b32 v75, 4, v{LANE}
    v_and_b32 v76, 15, v{LANE}
    v_add_u32 v75, v75, v76
    v_subrev_u32 v75, 15, v75
    v_max_i32 v75, 0, v75
    v_lshlrev_b32 v75, 1, v75
    v_mov_b32 v76, 0
    """)
    for j in range(4):
        a(f"buffer_load_dwordx4 {vr(HD+4*j)}, v74, {sr(R_C)}, s5 offen offset:{j*1024}")
        a(f"buffer_load_dwordx2 {vr(HE+2*j,2)}, v74, {sr(R_C)}, s5 offen offset:{j*1024+16}")
    a(f"buffer_load_ushort v{HFX}, v75, {sr(R_C)}, s5 offen")
    a(f"buffer_load_ushort v{HDV}, v76, {sr(R_D)}, s6 offen")
    return 10


def u_loads(a):
    a(f"""
    s_lshl_b32 s82, s2, 2
    s_lshl_b32 s83, s71, 1
    s_add_u32 s82, s82, s83
    s_lshl_b32 s82, s82, 12
    s_add_u32 s82, s82, {WS_UT:#x}
    s_add_u32 s83, s82, 4096
    """)
    for c in range(2):
        for j in range(4):
            a(f"buffer_load_dwordx4 {vr(16+16*c+4*j)}, v8, {sr(R_WS)}, s{82+c} offen offset:{j*1024} sc1")


def gen_prepass(a, cfg):
    a.label("L_prepass")
    vm = VM(a)
    srd(a, R_A, P_K, 4 << 20)
    srd(a, R_B, P_V, 4 << 20)
    srd(a, R_C, P_X, 4 << 20)
    KR, VR, WT, GX, GW = 16, 60, 92, 108, 140
    KA, KB, SKA, GA, UA = 2, 3, 4, 5, 6
    T = 152
    a(f"s_sub_u32 s71, s{S_WAVE}, 6")
    srd(a, R_D, P_DBG, 256)
    a(f"""
    s_cmp_lg_u32 s2, 0
    s_cbranch_scc1 L_notag
    s_cmp_lg_u32 s71, 0
    s_cbranch_scc1 L_notag
    s_memrealtime s[72:73]
    s_waitcnt lgkmcnt(0)
    s_or_b32 s72, s72, 1
    v_mov_b32 v13, s72
    v_mov_b32 v14, 0
    s_mov_b64 exec, 1
    buffer_store_dword v13, v14, {sr(R_D)}, 0 offen sc1
    s_mov_b64 exec, -1
    """)
    a.label("L_notag")
    pf = cfg.get("pf", 0)
    PFA, PFD = 246, 244
    if pf:
        a(f"""
        s_cmp_eq_u32 s71, 0
        s_cbranch_scc0 L_pf_w
        """)
        srd(a, 8, P_X, 4 << 20)
        srd(a, 12, P_H, 4 << 20)
        a(f"""
        v_lshrrev_b32 v8, 3, v{LANE}
        v_lshlrev_b32 v8, 11, v8
        v_and_b32 v9, 7, v{LANE}
        v_lshlrev_b32 v9, 6, v9
        v_add_u32 v8, v8, v9
        s_lshl_b32 s72, s2, 14
        v_add_u32 v{PFA}, s72, v8
        s_mov_b32 s6, 512
        s_mov_b32 s7, 0
        s_lshl_b32 s5, s2, 14
        s_branch L_pf_go
        L_pf_w:
        """)
        srd(a, 8, P_WQKV, 6 << 20)
        srd(a, 12, P_WO, 2 << 20)
        a(f"""
        v_and_b32 v8, 31, v{LANE}
        v_min_u32 v8, 23, v8
        v_lshlrev_b32 v8, 6, v8
        v_lshrrev_b32 v9, 5, v{LANE}
        v_mul_u32_u24 v9, 393216, v9
        v_add_u32 v8, v8, v9
        s_lshr_b32 s72, s2, 2
        s_mul_i32 s72, s72, 6144
        s_and_b32 s73, s2, 3
        s_mul_i32 s73, s73, 1536
        s_add_u32 s72, s72, s73
        v_add_u32 v{PFA}, s72, v8
        s_mov_b32 s6, 1572864
        s_mov_b32 s7, 786432
        s_lshl_b32 s5, s2, 13
        L_pf_go:
        """)

    def prefetch(group):
        if not pf:
            return
        a(f"s_mul_i32 s4, s6, {group}")
        a(f"buffer_load_dword v{PFD}, v{PFA}, s[8:11], s4 offen")
        a("s_add_u32 s4, s4, s7")
        a(f"buffer_load_dword v{PFD+1}, v{PFA}, s[8:11], s4 offen")
        vm.issue("pf", 2)

    def prefetch_late():
        if not pf:
            return
        a(f"v_lshlrev_b32 v{PFA}, 6, v{LANE}")
        for j in range(4):
            a(f"s_add_u32 s4, s5, {j*4096}")
            a(f"buffer_load_dword v{PFD+(j&1)}, v{PFA}, s[12:15], s4 offen")
        vm.issue("pf", 4)

    prefetch(1)
    a(f"""
    v_and_b32 v8, 7, v{LANE}
    v_lshrrev_b32 v9, 3, v{LANE}
    s_lshl_b32 s72, s71, 3
    s_lshl_b32 s73, s{S_MT}, 4
    s_add_u32 s72, s72, s73
    v_add_u32 v9, s72, v9
    s_lshl_b32 s73, s{S_HP}, 6
    v_lshlrev_b32 v10, 3, v8
    v_add_u32 v10, s73, v10
    v_lshlrev_b32 v11, 14, v9
    v_lshlrev_b32 v12, 1, v10
    v_add_u32 v{KB}, v11, v12
    v_subrev_u32 v{KA}, 6144, v{KB}
    v_lshlrev_b32 v{SKA}, 3, v10
    v_lshlrev_b32 v{GA}, 5, v{LANE}
    v_lshlrev_b32 v11, 12, v10
    v_lshlrev_b32 v12, 4, v9
    v_add_u32 v{UA}, v11, v12
    s_mov_b32 s74, 4096
    s_mov_b32 s75, 8192
    s_mov_b32 s76, 12288
    s_lshl_b32 s77, s{S_MT}, 7
    s_lshl_b32 s78, s{S_HP}, 3
    s_add_u32 s77, s77, s78
    s_lshl_b32 s78, s71, 2
    s_add_u32 s77, s77, s78
    s_lshl_b32 s78, s77, 11
    """)
    srd(a, 8, P_SK, 8192)
    srd(a, 12, P_GW, 2048)
    soff = ["0", "s74", "s75", "s76"]

    def rowload(dst, va, srdn, i):
        a(f"buffer_load_dwordx4 {vr(dst)}, v{va}, {sr(srdn)}, {soff[i//2]} offen offset:{(i%2)*2048}")
        vm.issue("pre")

    loads = []
    for i in range(3):
        loads.append(lambda i=i: rowload(KR + 4 * i, KA, R_A, i))
    for i in range(8):
        loads.append(lambda i=i: rowload(KR + 12 + 4 * i, KB, R_A, i))
    for i in range(8):
        loads.append(lambda i=i: rowload(VR + 4 * i, KB, R_B, i))

    def wload(i):
        a(f"buffer_load_dwordx4 {vr(WT+4*i)}, v{SKA}, s[8:11], 0 offen offset:{16*i}")
        vm.issue("pre")
    for i in range(4):
        loads.append(lambda i=i: wload(i))

    def gload(r, i):
        a(f"s_add_u32 s79, s78, {r*2048}")
        a(f"buffer_load_dwordx4 {vr(GX+8*r+4*i)}, v{GA}, {sr(R_C)}, s79 offen offset:{16*i}")
        vm.issue("gate")

    def gwload(i):
        a(f"buffer_load_dwordx4 {vr(GW+4*i)}, v{GA}, s[12:15], 0 offen offset:{16*i}")
        vm.issue("gate")
    gloads = [lambda r=r, i=i: gload(r, i) for r in range(4) for i in range(2)] + [lambda i=i: gwload(i) for i in range(2)]

    def tagload():
        a(f"v_mov_b32 v14, 0\nbuffer_load_dword v15, v14, {sr(R_D)}, 0 offen sc1")
        vm.issue("tag")

    def channel(j):
        if cfg.get("exp", 0) & 4:
            return
        dw, half = j >> 1, j & 1
        W, Kf, Of, P = T, T + 4, T + 16, T + 24
        for tau in range(4):
            unpack(a, W + tau, WT + 2 * j + (tau >> 1), tau & 1)
        for i in range(11):
            unpack(a, Kf + i, KR + 4 * i + dw, half)
        for i in range(8):
            a(f"v_mul_f32 v{Of+i}, v{W+3}, v{Kf+i}")
        for tau in (2, 1, 0):
            for i in range(8):
                a(f"v_fmac_f32 v{Of+i}, v{W+tau}, v{Kf+i+3-tau}")
        for i in range(8):
            unpack(a, Kf + i, VR + 4 * i + dw, half)
        for i in range(8):
            a(f"v_mul_f32 v{Of+i}, v{Of+i}, v{Kf+i}")
        P = P + 4 * (j & 1)
        for m in range(4):
            a(f"v_cvt_pk_bf16_f32 v{P+m}, v{Of+7-2*m}, v{Of+6-2*m}")
        a(f"s_mov_b32 s80, {WS_UT + j*4096:#x}")
        a(f"buffer_store_dwordx4 {vr(P)}, v{UA}, {sr(R_WS)}, s80 offen sc1")
        vm.issue("ut")


    def gate():
        vm.wait("gate")
        Z = T + 32
        for r in range(4):
            a(f"v_mov_b32 v{Z+r}, 0")
        for i in range(8):
            for r in range(4):
                a(f"v_dot2_f32_bf16 v{Z+r}, v{GX+8*r+i}, v{GW+i}, v{Z+r}")
        for ctl in ("row_shr:1 row_mask:0xf", "row_shr:2 row_mask:0xf", "row_shr:4 row_mask:0xf",
                    "row_shr:8 row_mask:0xf", "row_bcast:15 row_mask:0xa", "row_bcast:31 row_mask:0xc"):
            a("s_nop 1")
            for r in range(4):
                a(f"v_add_f32_dpp v{Z+r}, v{Z+r}, v{Z+r} {ctl} bank_mask:0xf")
        a(f"s_mov_b32 s80, {LOG2E ^ 0x80000000:#x}")
        for r in range(4):
            a(f"v_mul_f32 v{Z+r}, s80, v{Z+r}")
        for r in range(4):
            a(f"v_exp_f32 v{Z+r}, v{Z+r}")
        a("s_nop 0")
        for r in range(4):
            a(f"v_add_f32 v{Z+r}, 1.0, v{Z+r}")
        for r in range(4):
            a(f"v_rcp_f32 v{Z+r}, v{Z+r}")
        a(f"""
        s_lshl_b32 s80, s77, 2
        s_add_u32 s80, s80, {WS_G:#x}
        v_mov_b32 v{Z+4}, 0
        v_cmp_eq_u32 vcc, 63, v{LANE}
        s_and_saveexec_b64 s[82:83], vcc
        buffer_store_dwordx4 {vr(Z)}, v{Z+4}, {sr(R_WS)}, s80 offen sc1
        s_mov_b64 exec, s[82:83]
        """)
        vm.issue("g")

    def tagcheck():
        lab = a.newlab("L_tag")
        vm.wait("tag")
        a(f"v_readfirstlane_b32 s{S_NONCE}, v15\ns_mov_b32 s80, 0\ns_cmp_lg_u32 s{S_NONCE}, 0\ns_cbranch_scc1 L_tagok")
        a.label(lab)
        a(f"""
        buffer_load_dword v15, v14, {sr(R_D)}, 0 offen sc1
        s_waitcnt vmcnt(0)
        v_readfirstlane_b32 s{S_NONCE}, v15
        s_add_u32 s80, s80, 1
        s_cmp_lg_u32 s{S_NONCE}, 0
        s_cbranch_scc1 L_tagok
        s_cmp_lt_u32 s80, {SPIN_MAX}
        s_cbranch_scc1 {lab}
        """)
        a.label("L_tagok")

    def publish():
        vm.drain()
        flag_off(0, S_HP, S_MT, 80, a)
        a("s_lshl_b32 s81, s71, 2")
        signal(a, 80, ("81", ), 8)

    def some(lst, lo, hi):
        return lambda: [f() for f in lst[lo:hi]]
    wait_pre = lambda: vm.wait("pre")
    ch = lambda j: (lambda: channel(j))
    sched = cfg.get("sched", 1)
    if sched == 0:
        plan = {-1: [some(loads, 0, 23), some(gloads, 0, 10), tagload],
                2: [wait_pre, ch(0), ch(1)], 3: [ch(2), ch(3)], 4: [ch(4), ch(5)], 5: [ch(6), ch(7)],
                6: [gate], 7: [tagcheck], 8: [publish]}
    elif sched == 1:
        plan = {1: [some(loads, 0, 11)], 2: [some(loads, 11, 23)], 3: [some(gloads, 0, 10), tagload],
                4: [wait_pre, ch(0), ch(1)], 5: [ch(2), ch(3)], 6: [ch(4), ch(5)], 7: [ch(6), ch(7)],
                8: [gate, tagcheck], 10: [publish]}
    elif sched == 2:
        plan = {0: [some(loads, 0, 4)], 1: [some(loads, 4, 8)], 2: [some(loads, 8, 12)], 3: [some(loads, 12, 16)],
                4: [some(loads, 16, 20)], 5: [some(loads, 20, 23), tagload], 6: [some(gloads, 0, 5)],
                7: [wait_pre, some(gloads, 5, 10), ch(0), ch(1)], 8: [ch(2), ch(3), ch(4)], 9: [ch(5), ch(6), ch(7)],
                10: [gate, tagcheck], 11: [publish]}
    elif sched == 3:
        plan = {-1: [some(loads, 0, 23), tagload], 2: [wait_pre, ch(0)], 3: [ch(1)], 4: [ch(2), some(gloads, 0, 5)],
                5: [ch(3), some(gloads, 5, 10)], 6: [ch(4)], 7: [ch(5)], 8: [ch(6)], 9: [ch(7)],
                10: [gate, tagcheck], 11: [publish]}
    for b in range(-1, 13):
        if b >= 0:
            a("s_barrier")
        for f in plan.get(b, []):
            f()
    nh = h_loads(a)
    a("s_barrier")
    a(f"""
    v_mov_b32 v16, 0
    v_mov_b32 v17, 0
    v_mov_b32 v18, 0
    v_mov_b32 v19, 0
    v_mov_b32 v12, {L_FLG}
    v_mov_b32 v13, s{S_NONCE}
    ds_write_b128 v12, v[16:19]
    ds_write_b128 v12, v[16:19] offset:16
    ds_write_b128 v12, v[16:19] offset:32
    ds_write_b32 v12, v13 offset:{F_NONCE}
    v_lshlrev_b32 v8, 4, v{LANE}
    s_mul_i32 s82, s71, {2*U_CH}
    s_add_u32 s82, s82, {L_U}
    v_add_u32 v{LANE-2}, s82, v8
    v_and_b32 v9, 31, v{LANE}
    v_lshlrev_b32 v9, 4, v9
    v_add_u32 v9, s82, v9
    ds_write_b128 v9, v[16:19]
    ds_write_b128 v9, v[16:19] offset:{U_CH}
    v_lshrrev_b32 v9, 2, v{LANE}
    v_lshlrev_b32 v10, 8, v9
    v_and_b32 v12, 3, v{LANE}
    v_lshlrev_b32 v12, 2, v12
    v_add_u32 v10, v10, v12
    v_lshlrev_b32 v11, 12, v9
    v_add_u32 v11, v11, v12
    s_lshr_b32 s80, s2, 4
    s_lshl_b32 s80, s80, 12
    s_add_u32 s80, s80, {WS_FL:#x}
    s_lshl_b32 s81, s{S_MT3}, 8
    s_add_u32 s81, s81, {WS_FL:#x}
    s_waitcnt lgkmcnt(0)
    s_barrier
    buffer_load_dword v12, v10, {sr(R_WS)}, s80 offen sc1
    buffer_load_dword v13, v11, {sr(R_WS)}, s81 offen sc1
    s_barrier
    s_mov_b32 s72, 0x33333333
    s_mov_b32 s73, 0x33333333
    s_waitcnt vmcnt(0)
    v_cmp_eq_u32 vcc, s{S_NONCE}, v12
    v_cmp_eq_u32 s[74:75], s{S_NONCE}, v13
    s_nop 3
    s_and_b64 vcc, vcc, s[74:75]
    s_and_b64 vcc, vcc, s[72:73]
    s_cmp_eq_u64 vcc, s[72:73]
    s_cbranch_scc1 L_pp_ready
    """)
    poll_lines(a, 10, 80, 2, 12, 72)
    poll_lines(a, 11, 81, 2, 12, 72)
    a.label("L_pp_ready")
    u_loads(a)
    stamp(a, 2)


def gen_conv(a, cfg):
    a.label("L_conv")
    ACC, AP = 0, 160
    AF, BF = [32, 96], [64, 128]
    VA, VB, VY = 164, 165, 166
    a(f"""
    s_sub_u32 s71, s{S_WAVE}, 4
    s_lshl_b32 s72, s2, 2
    s_add_u32 s72, s72, s71
    s_mul_i32 s73, s71, {H_CH}
    s_lshl_b32 s74, s72, 12
    v_lshlrev_b32 v1, 4, v{LANE}
    v_lshrrev_b32 v2, 4, v{LANE}
    v_and_b32 v3, 15, v{LANE}
    v_add_u32 v4, v2, v3
    v_subrev_u32 v4, 15, v4
    v_add_u32 v5, s73, v1
    v_mov_b32 v10, 0
    v_mul_u32_u24 v14, {COPY}, v2
    v_lshlrev_b32 v15, 1, v3
    v_add_u32 v14, v14, v15
    v_add_u32 v14, s73, v14
    v_and_b32 v6, 3, v3
    v_mul_u32_u24 v6, {COPY}, v6
    v_lshlrev_b32 v7, 4, v2
    v_add_u32 v6, v6, v7
    v_lshrrev_b32 v7, 2, v3
    v_lshlrev_b32 v7, 3, v7
    v_add_u32 v6, v6, v7
    v_add_u32 v{VA}, s73, v6
    v_lshlrev_b32 v6, 1, v3
    v_add_u32 v6, 1, v6
    v_sub_u32 v6, v6, v2
    v_lshlrev_b32 v6, 4, v6
    s_mul_i32 s75, s71, {U_CH}
    s_add_u32 s75, s75, {L_U + 64}
    v_add_u32 v{VB}, s75, v6
    v_lshlrev_b32 v6, 5, v3
    v_lshlrev_b32 v7, 3, v2
    v_add_u32 v{VY}, v6, v7
    v_mov_b32 v9, {L_FLG}
    ds_read_b32 v11, v9 offset:{F_NONCE}
    s_waitcnt vmcnt(0)
    """)
    a("s_cmp_lt_u32 s71, 2\ns_cbranch_scc1 L_conv_nou")
    for c in range(2):
        for j in range(4):
            a(f"ds_write_b128 v{LANE-2}, {vr(16+16*c+4*j)} offset:{c*U_CH + 512 + j*1024}")
    a(f"""
    v_mov_b32 v12, 1
    s_waitcnt lgkmcnt(0)
    s_mov_b64 exec, 1
    ds_add_u32 v9, v12 offset:{F_U}
    s_mov_b64 exec, -1
    """)
    a.label("L_conv_nou")
    TB = 76
    for j in range(4):
        d = [HD + 4 * j + m for m in range(4)] + [HE + 2 * j, HE + 2 * j + 1]
        for m in range(4):
            a(f"v_alignbit_b32 v{TB+m}, v{d[m+1]}, v{d[m]}, 16")
        for m in range(4):
            a(f"v_mov_b32 v{TB+4+m}, v{d[m+1]}")
        for m in range(4):
            a(f"v_alignbit_b32 v{TB+8+m}, v{d[m+2]}, v{d[m+1]}, 16")
        for m in range(2):
            a(f"v_mov_b32 v{TB+12+m}, v{d[m+2]}")
        for m in range(2):
            a(f"v_mov_b32 v{TB+14+m}, v{d[m+4]}")
        for c in range(4):
            a(f"ds_write_b128 v5, {vr(TB+4*c)} offset:{c*COPY + 32 + j*1024}")
        TB = 92 if TB == 76 else 76
    a(f"""
    v_cmp_gt_i32 vcc, 0, v4
    v_sub_u32 v16, 15, v3
    v_lshrrev_b32 v17, 3, v16
    v_cndmask_b32 v6, v{HFX}, v10, vcc
    v_and_b32 v18, 1, v16
    v_lshlrev_b32 v18, 4, v18
    v_lshlrev_b32 v8, v18, v{HDV}
    v_cmp_eq_u32 vcc, v17, v2
    ds_write_b16 v14, v6
    v_bfe_u32 v19, v16, 1, 2
    v_cndmask_b32 v8, v10, v8, vcc
    """)
    for m in range(4):
        a(f"v_cmp_eq_u32 vcc, {m}, v19")
        a("s_nop 1")
        a(f"v_cndmask_b32 v{AP+m}, v10, v8, vcc")
    a(f"s_waitcnt lgkmcnt(0)\nv_readfirstlane_b32 s{S_NONCE}, v11")
    lds_poll(a, 9, F_U, 2, 12, 76)
    stamp(a, 3)

    def rd(rho, s):
        r = []
        for i in range(8):
            r.append(f"ds_read_b128 {vr(BF[s]+4*i)}, v{VB} offset:{512*i + 64*(7-rho)}")
            n = 8 * i + rho
            r.append(f"ds_read_b64 {vr(AF[s]+4*i,2)}, v{VA} offset:{64*n}")
            r.append(f"ds_read_b64 {vr(AF[s]+4*i+2,2)}, v{VA} offset:{64*n+8}")
        return r

    def mm(rho, s):
        m = []
        for T in range(8):
            for i in range(T + 1):
                c = "0" if (rho == 0 and i == 0) else vr(ACC + 4 * T)
                m.append(mfma(ACC + 4 * T, AF[s] + 4 * i, BF[s] + 4 * (T - i), c))
            if rho == 0:
                m.append(mfma(ACC + 4 * T, AP, BF[s] + 4 * T, vr(ACC + 4 * T)))
        return m

    for x in rd(0, 0):
        a(x)
    for rho in range(8):
        s = rho & 1
        a("s_waitcnt lgkmcnt(0)")
        nxt = rd(rho + 1, s ^ 1) if rho < 7 else []
        k = 0
        for x in mm(rho, s):
            a(x)
            if k < len(nxt):
                a(nxt[k]); k += 1
        assert k == len(nxt)
    a("s_nop 7")
    stamp(a, 4)
    a(f"s_add_u32 s75, s74, {WS_YT:#x}")
    for T in range(8):
        a(f"v_cvt_pk_bf16_f32 v{32+2*T}, v{ACC+4*T}, v{ACC+4*T+1}")
        a(f"v_cvt_pk_bf16_f32 v{33+2*T}, v{ACC+4*T+2}, v{ACC+4*T+3}")
    for T in range(8):
        a(f"buffer_store_dwordx2 {vr(32+2*T,2)}, v{VY}, {sr(R_WS)}, s75 offen offset:{512*T} sc1")
    a(f"""
    v_mov_b32 v2, {L_FLG}
    v_mov_b32 v3, 1
    s_mov_b64 exec, 1
    ds_add_u32 v2, v3 offset:{F_CONV}
    s_mov_b64 exec, -1
    s_waitcnt vmcnt(0)
    s_lshr_b32 s76, s2, 4
    s_and_b32 s77, s2, 15
    """)
    flag_off(3, 76, 77, 78, a)
    a("s_lshl_b32 s79, s71, 2")
    signal(a, 78, ("79", ), 4)
    lds_poll(a, 2, F_CONV, 4, 4, 76)
    stamp(a, 5)
    a("s_cmp_ge_u32 s71, 2\ns_cbranch_scc1 L_yload")

    lds_poll(a, 2, F_RED, 4, 4, 76)
    NG = 8
    vm = VM(a)
    vm.issue("other", 1)
    srd(a, R_A, P_WO, 2 << 20)
    a(f"""
    v_lshrrev_b32 v4, 3, v{LANE}
    v_and_b32 v5, 7, v{LANE}
    v_bfe_u32 v6, v{LANE}, 4, 2
    v_lshlrev_b32 v6, 1, v6
    v_xor_b32 v5, v5, v6
    v_lshlrev_b32 v5, 4, v5
    v_lshlrev_b32 v4, 11, v4
    v_add_u32 v1, v4, v5
    s_lshl_b32 s72, s{S_NT3}, 7
    s_lshl_b32 s73, s71, 15
    s_add_u32 s72, s72, s73
    s_lshl_b32 s73, s71, 11
    """)
    for g in range(NG):
        for h in HEAD_ORDER[4 * g:4 * g + 4]:
            for i in range(2):
                p0 = 4 * h + i
                a(f"s_add_u32 m0, s73, {p0*1024}")
                a(f"s_add_u32 s74, s72, {p0*16384}")
                a(f"buffer_load_dwordx4 v1, {sr(R_A)}, s74 offen lds")
                vm.issue(("w", g))
    stamp(a, 6)
    a("s_waitcnt vmcnt(0)\ns_barrier")
    stamp(a, 7)
    a("s_barrier")
    stamp_flush(a)
    a("s_endpgm")

    a.label("L_yload")
    a("s_barrier")
    a(f"""
    v_lshrrev_b32 v8, 2, v{LANE}
    v_lshlrev_b32 v8, 8, v8
    v_and_b32 v9, 3, v{LANE}
    v_lshlrev_b32 v9, 2, v9
    v_add_u32 v8, v8, v9
    s_lshl_b32 s80, s{S_NT3}, 12
    s_add_u32 s80, s80, {WS_FL + 3*65536:#x}
    """)
    poll_lines(a, 8, 80, 4, 10, 72)
    a(f"""
    s_sub_u32 s71, s71, 2
    v_lshrrev_b32 v4, 4, v{LANE}
    v_and_b32 v5, 15, v{LANE}
    v_lshlrev_b32 v6, 12, v4
    v_lshlrev_b32 v5, 4, v5
    v_add_u32 v6, v6, v5
    v_lshlrev_b32 v7, 8, v4
    v_add_u32 v7, v7, v5
    s_lshl_b32 s72, s{S_NT3}, 18
    s_lshl_b32 s73, s{S_MT3}, 8
    s_add_u32 s72, s72, s73
    s_lshl_b32 s73, s71, 17
    s_add_u32 s72, s72, s73
    s_add_u32 s72, s72, {WS_YT:#x}
    s_lshl_b32 s73, s71, 13
    s_add_u32 s73, s73, {L_Y}
    v_add_u32 v7, s73, v7
    """)
    for i in range(8):
        a(f"s_add_u32 s74, s72, {i*16384}")
        a(f"buffer_load_dwordx4 {vr(16+4*i)}, v6, {sr(R_WS)}, s74 offen sc1")
    a("s_waitcnt vmcnt(0)")
    for i in range(8):
        a(f"ds_write_b128 v7, {vr(16+4*i)} offset:{i*1024}")
    a("s_waitcnt lgkmcnt(0)")
    stamp(a, 6)
    a("s_barrier")
    stamp(a, 7)
    stamp_flush(a)
    a("s_endpgm")


def gen_compute(a, cfg):
    a.label("L_compute")
    Q = lambda dt, rt: 0 + 4 * (4 * dt + rt)
    K = lambda rt, dt: 32 + 4 * (2 * rt + dt)
    V = lambda rt, et: 64 + 4 * (2 * rt + et)
    FS = [96, 136]
    AB, AC = 176, 180
    BAR_AT = cfg.get("barat", 5)
    W1 = {0: [0, 8, 16], 1: [0], 2: [0, 8], 3: None}[cfg.get("w1", 0)]
    a(f"""
    s_and_b32 s71, s{S_WAVE}, 1
    s_lshr_b32 s72, s{S_WAVE}, 1
    v_and_b32 v1, 15, v{LANE}
    v_lshrrev_b32 v2, 4, v{LANE}
    v_lshrrev_b32 v3, 1, v1
    v_xor_b32 v3, v3, v2
    v_lshlrev_b32 v3, 4, v3
    s_lshl_b32 s73, s72, 13
    v_lshlrev_b32 v4, 7, v1
    v_add_u32 v4, s73, v4
    v_add_u32 v{AB}, v4, v3
    v_xor_b32 v{AB+1}, 64, v{AB}
    v_bfe_u32 v3, v{LANE}, 2, 2
    v_lshlrev_b32 v4, 3, v2
    v_add_u32 v4, v4, v3
    v_lshlrev_b32 v4, 7, v4
    v_lshrrev_b32 v3, 1, v3
    v_and_b32 v5, 1, v2
    v_lshlrev_b32 v5, 1, v5
    v_or_b32 v3, v3, v5
    v_lshlrev_b32 v3, 1, v3
    v_bfe_u32 v5, v{LANE}, 1, 1
    s_lshl_b32 s73, s71, 2
    v_or_b32 v5, s73, v5
    v_xor_b32 v3, v3, v5
    v_lshlrev_b32 v3, 4, v3
    v_add_u32 v4, v4, v3
    v_and_b32 v3, 1, v{LANE}
    v_lshlrev_b32 v3, 3, v3
    v_add_u32 v4, v4, v3
    v_add_u32 v{AB+2}, 16384, v4
    v_xor_b32 v{AB+3}, 32, v{AB+2}
    s_mov_b32 s74, {(NS-1)*SLOT}
    """)
    if cfg.get("cpf", 1):
        a(f"""
        s_getpc_b64 s[4:5]
        L_pc:
        s_sub_u32 s4, s4, L_pc-{KNAME}
        s_subb_u32 s5, s5, 0
        s_lshl_b32 s6, s{S_WAVE}, 13
        v_lshlrev_b32 v6, 6, v{LANE}
        v_add_u32 v6, s6, v6
        v_min_u32 v7, L_end-{KNAME}, v6
        global_load_dword v240, v7, s[4:5]
        v_add_u32 v6, 4096, v6
        v_min_u32 v7, L_end-{KNAME}, v6
        global_load_dword v241, v7, s[4:5]
        """)
    for i in range(4):
        a(f"v_add_u32 v{AC+i}, s74, v{AB+i}")
    for r in range(96):
        a(f"v_mov_b32 v{r}, 0")

    def reads(kk, fs):
        X = lambda rt: fs + 4 * rt
        W = lambda seg, ct: fs + 16 + 8 * seg + 4 * ct
        r = []
        for seg in range(3):
            for ct in range(2):
                for t in range(2):
                    r.append((f"ds_read_b64_tr_b16 {vr(W(seg,ct)+2*t,2)}, v{AC+2+ct} offset:{seg*8192+kk*4096+t*512}", ("w", seg, ct, t)))
            if seg == 0:
                for rt in range(4):
                    r.append((f"ds_read_b128 {vr(X(rt))}, v{AC+kk} offset:{rt*2048}", ("x", rt)))
        return r

    def mfmas(fs):
        X = lambda rt: fs + 4 * rt
        W = lambda seg, ct: fs + 16 + 8 * seg + 4 * ct
        m = []
        for rt in range(4):
            for dt in range(2):
                m.append((mfma(Q(dt, rt), W(0, dt), X(rt), vr(Q(dt, rt))), [("x", rt), ("w", 0, dt, 1)]))
        for rt in range(4):
            for dt in range(2):
                m.append((mfma(K(rt, dt), X(rt), W(1, dt), vr(K(rt, dt))), [("x", rt), ("w", 1, dt, 1)]))
        for rt in range(4):
            for et in range(2):
                m.append((mfma(V(rt, et), X(rt), W(2, et), vr(V(rt, et))), [("x", rt), ("w", 2, et, 1)]))
        return m

    stamp(a, 1)
    a("s_barrier")
    stamp(a, 2)
    for r, _ in reads(0, FS[0]):
        a(r)
    a("s_mov_b32 s75, 0")
    a.label("L_gemm1")
    tags = [t for _, t in reads(0, FS[0])]
    exp = cfg.get("exp", 0)
    if exp & 1:
        _reads = reads
        reads = lambda kk, fs: []
        tags = []
        _m = mfmas
        mfmas = lambda fs: [(t, []) for t, _ in _m(fs)]
    if exp & 2:
        _m2 = mfmas
        mfmas = lambda fs: [("s_nop 0", n) for _, n in _m2(fs)]
    weave(a, mfmas(FS[0]), tags, reads(1, FS[1]), waits=W1)
    upd = f"s_add_u32 s74, s74, {SLOT}\ns_cmp_eq_u32 s74, {NS*SLOT}\ns_cselect_b32 s74, 0, s74"
    hooks = {1: upd, BAR_AT: "s_waitcnt lgkmcnt(0)\ns_cmp_eq_u32 s75, 15\ns_cbranch_scc1 L_g1_nobar\ns_barrier\nL_g1_nobar:\n" + "\n".join(f"v_add_u32 v{AC+i}, s74, v{AB+i}" for i in range(4))}
    weave(a, mfmas(FS[1]), tags, reads(0, FS[0]), start=BAR_AT + 1, hooks=hooks, waits=W1)
    a("s_add_u32 s75, s75, 1\ns_cmp_lt_u32 s75, 16\ns_cbranch_scc1 L_gemm1")
    stamp(a, 3)

    TMP = 96
    PK = lambda p, dt: 128 + 4 * (2 * p + dt)
    PV = lambda p, et: 144 + 4 * (2 * p + et)
    ONES = 160
    KV = lambda dt, et: 164 + 4 * (2 * dt + et)
    ZZ = lambda dt: 180 + 4 * dt
    VL = 224
    VF = 230
    S_L2E, S_EPS = 76, 77
    a(f"""
    s_mov_b32 s{S_L2E}, {LOG2E:#x}
    s_mov_b32 s{S_EPS}, {EPS6:#x}
    v_lshlrev_b32 v{VL}, 4, v{LANE}
    v_mov_b32 v{VF}, {L_FLG}
    v_mov_b32 v{ONES}, 0x3f803f80
    v_mov_b32 v{ONES+1}, 0x3f803f80
    v_mov_b32 v{ONES+2}, 0x3f803f80
    v_mov_b32 v{ONES+3}, 0x3f803f80
    s_waitcnt lgkmcnt(0)
    ds_read_b32 v{VF+1}, v{VF} offset:{F_NONCE}
    s_nop 3
    """)
    phi(a, [K(rt, dt) + e for rt in range(4) for dt in range(2) for e in range(4)], TMP, S_L2E, S_EPS)
    for p in range(2):
        for dt in range(2):
            for hlf in range(2):
                src = K(2 * p + hlf, dt)
                a(f"v_cvt_pk_bf16_f32 v{PK(p,dt)+2*hlf}, v{src}, v{src+1}")
                a(f"v_cvt_pk_bf16_f32 v{PK(p,dt)+2*hlf+1}, v{src+2}, v{src+3}")
        for et in range(2):
            for hlf in range(2):
                src = V(2 * p + hlf, et)
                a(f"v_cvt_pk_bf16_f32 v{PV(p,et)+2*hlf}, v{src}, v{src+1}")
                a(f"v_cvt_pk_bf16_f32 v{PV(p,et)+2*hlf+1}, v{src+2}, v{src+3}")
    a(f"s_waitcnt lgkmcnt(0)\nv_readfirstlane_b32 s{S_NONCE}, v{VF+1}")
    for p in range(2):
        for dt in range(2):
            for et in range(2):
                a(mfma(KV(dt, et), PK(p, dt), PV(p, et), "0" if p == 0 else vr(KV(dt, et))))
            a(mfma(ZZ(dt), PK(p, dt), ONES, "0" if p == 0 else vr(ZZ(dt))))
    a(f"""
    s_lshl_b32 s78, s71, 12
    s_add_u32 s78, s78, {L_KVX}
    v_add_u32 v{VL+2}, s78, v{VL}
    v_lshrrev_b32 v{VL+3}, 4, v{LANE}
    v_lshlrev_b32 v{VL+3}, 4, v{VL+3}
    s_lshl_b32 s78, s71, 7
    s_add_u32 s78, s78, {L_ZX}
    v_add_u32 v{VL+4}, s78, v{VL+3}
    s_lshl_b32 s79, s71, 2
    v_add_u32 v{VL+5}, s79, v{VF}
    s_lshl_b32 s80, s{S_HP}, 1
    s_add_u32 s80, s80, s71
    s_cmp_eq_u32 s72, 0
    s_cbranch_scc1 L_kvlower
    """)
    for t in range(4):
        a(f"ds_write_b128 v{VL+2}, {vr(KV(t>>1,t&1))} offset:{t*1024}")
    for dt in range(2):
        a(f"ds_write_b128 v{VL+4}, {vr(ZZ(dt))} offset:{dt*64}")
    a(f"""
    v_mov_b32 v{TMP}, 1
    s_waitcnt lgkmcnt(0)
    ds_write_b32 v{VL+5}, v{TMP} offset:{F_KVX}
    s_branch L_kvdone
    """)
    a.label("L_kvlower")
    lds_poll(a, VL + 5, F_KVX, 1, TMP, 82)
    for t in range(4):
        a(f"ds_read_b128 {vr(TMP+4*t)}, v{VL+2} offset:{t*1024}")
    for dt in range(2):
        a(f"ds_read_b128 {vr(TMP+16+4*dt)}, v{VL+4} offset:{dt*64}")
    a(f"""
    s_lshl_b32 s81, s{S_MT}, 5
    s_add_u32 s81, s81, s80
    s_lshl_b32 s82, s81, 11
    s_add_u32 s82, s82, {WS_KVP:#x}
    s_lshl_b32 s83, s81, 7
    s_add_u32 s83, s83, {WS_ZP:#x}
    s_waitcnt lgkmcnt(0)
    """)
    for t in range(4):
        for e in range(4):
            a(f"v_add_f32 v{KV(t>>1,t&1)+e}, v{KV(t>>1,t&1)+e}, v{TMP+4*t+e}")
    for dt in range(2):
        for e in range(4):
            a(f"v_add_f32 v{ZZ(dt)+e}, v{ZZ(dt)+e}, v{TMP+16+4*dt+e}")
    for et in range(2):
        for dt in range(2):
            a(f"v_cvt_pk_bf16_f32 v{TMP+4*et+2*dt}, v{KV(dt,et)}, v{KV(dt,et)+1}")
            a(f"v_cvt_pk_bf16_f32 v{TMP+4*et+2*dt+1}, v{KV(dt,et)+2}, v{KV(dt,et)+3}")
        a(f"buffer_store_dwordx4 {vr(TMP+4*et)}, v{VL}, {sr(R_WS)}, s82 offen offset:{et*1024} sc1")
    a(f"""
    v_and_b32 v{TMP+24}, 15, v{LANE}
    v_cmp_eq_u32 vcc, 0, v{TMP+24}
    s_and_saveexec_b64 s[78:79], vcc
    """)
    for dt in range(2):
        a(f"buffer_store_dwordx4 {vr(ZZ(dt))}, v{VL+3}, {sr(R_WS)}, s83 offen offset:{dt*64} sc1")
    a("s_mov_b64 exec, s[78:79]\ns_waitcnt vmcnt(0)")
    flag_off(1, S_HP, S_MT, 82, a)
    a("s_lshl_b32 s83, s71, 2")
    signal(a, 82, ("83", ), TMP)
    a.label("L_kvdone")
    stamp(a, 4)

    PQ = lambda rt: 32 + 4 * rt
    phi(a, [Q(dt, rt) + e for dt in range(2) for rt in range(4) for e in range(4)], TMP, S_L2E, S_EPS)
    for rt in range(4):
        for dt in range(2):
            a(f"v_cvt_pk_bf16_f32 v{PQ(rt)+2*dt}, v{Q(dt,rt)}, v{Q(dt,rt)+1}")
            a(f"v_cvt_pk_bf16_f32 v{PQ(rt)+2*dt+1}, v{Q(dt,rt)+2}, v{Q(dt,rt)+3}")
    VP = 232
    a(f"""
    v_lshrrev_b32 v{VP}, 2, v{LANE}
    v_lshlrev_b32 v{VP}, 8, v{VP}
    v_and_b32 v{VP+1}, 3, v{LANE}
    v_lshlrev_b32 v{VP+1}, 2, v{VP+1}
    v_add_u32 v{VP}, v{VP}, v{VP+1}
    s_lshl_b32 s78, s{S_HQ}, 12
    s_add_u32 s78, s78, {WS_FL + 65536:#x}
    """)
    poll_lines(a, VP, 78, 2, VP + 2, 80)
    stamp(a, 5)
    PART = 96
    SUM = 160
    a(f"""
    s_lshl_b32 s78, s{S_HQ}, 1
    s_add_u32 s78, s78, s71
    s_lshl_b32 s79, s78, 11
    s_lshl_b32 s80, s72, 10
    s_add_u32 s79, s79, s80
    s_add_u32 s79, s79, {WS_KVP:#x}
    v_and_b32 v48, 15, v{LANE}
    v_lshlrev_b32 v48, 12, v48
    v_lshrrev_b32 v49, 4, v{LANE}
    v_lshlrev_b32 v49, 4, v49
    v_add_u32 v48, v48, v49
    s_lshl_b32 s80, s78, 7
    s_add_u32 s80, s80, {WS_ZP:#x}
    buffer_load_dwordx4 v[52:55], v48, {sr(R_WS)}, s80 offen sc1
    buffer_load_dwordx4 v[56:59], v48, {sr(R_WS)}, s80 offen offset:64 sc1
    """)
    for p in range(16):
        a(f"s_add_u32 s81, s79, {p*32*2048}")
        a(f"buffer_load_dwordx4 {vr(PART+4*p)}, v{VL}, {sr(R_WS)}, s81 offen sc1")
    for e in range(8):
        a(f"v_mov_b32 v{SUM+e}, 0")
    a("s_mov_b32 s82, 0x3f80\ns_mov_b32 s83, 0x3f800000")
    a("s_waitcnt vmcnt(16)")
    for ctl in ("row_ror:8", "row_ror:4", "row_ror:2", "row_ror:1"):
        for e in range(8):
            a(f"v_add_f32_dpp v{52+e}, v{52+e}, v{52+e} {ctl} row_mask:0xf bank_mask:0xf")
    ZF = 60
    for i in range(4):
        a(f"v_cvt_pk_bf16_f32 v{ZF+i}, v{52+2*i}, v{52+2*i+1}")
    for p in range(16):
        if p % 2 == 0:
            a(f"s_waitcnt vmcnt({14-p})")
        for i in range(4):
            a(f"v_dot2_f32_bf16 v{SUM+2*i}, v{PART+4*p+i}, s82, v{SUM+2*i}")
            a(f"v_dot2_f32_bf16 v{SUM+2*i+1}, v{PART+4*p+i}, s83, v{SUM+2*i+1}")
    stamp(a, 11)
    a("s_nop 2")
    KF = [64, 68]
    for i in range(4):
        a(f"v_cvt_pk_bf16_f32 v{64+i}, v{SUM+2*i}, v{SUM+2*i+1}")
    a(f"""
    s_lshl_b32 s78, s71, 11
    s_lshl_b32 s79, s72, 10
    s_add_u32 s78, s78, {L_OX}
    s_add_u32 s80, s78, s79
    s_xor_b32 s79, s79, 1024
    s_add_u32 s81, s78, s79
    v_add_u32 v50, s80, v{VL}
    v_add_u32 v51, s81, v{VL}
    ds_write_b128 v50, v[64:67]
    s_lshl_b32 s78, s{S_WAVE}, 2
    s_xor_b32 s79, s78, 8
    v_add_u32 v48, s78, v{VF}
    v_add_u32 v49, s79, v{VF}
    v_mov_b32 v72, 1
    s_waitcnt lgkmcnt(0)
    ds_write_b32 v48, v72 offset:{F_OX}
    """)
    lds_poll(a, 49, F_OX, 1, 72, 82)
    a("ds_read_b128 v[68:71], v51\ns_waitcnt lgkmcnt(0)")
    stamp(a, 12)
    a(f"""
    s_cmp_eq_u32 s72, 0
    s_cbranch_scc1 L_noswap
    v_swap_b32 v64, v68
    v_swap_b32 v65, v69
    v_swap_b32 v66, v70
    v_swap_b32 v67, v71
    """)
    a.label("L_noswap")
    NUM = lambda et, rt: 96 + 4 * (4 * et + rt)
    DEN = lambda rt: 128 + 4 * rt
    a("s_nop 1")
    for rt in range(4):
        for et in range(2):
            a(mfma(NUM(et, rt), KF[et], PQ(rt), "0"))
        a(mfma(DEN(rt), ZF, PQ(rt), "0"))
    a(f"""
    s_lshl_b32 s78, s{S_MT}, 3
    s_lshl_b32 s79, s72, 2
    s_add_u32 s78, s78, s79
    s_lshl_b32 s78, s78, 5
    s_lshl_b32 s79, s{S_HQ}, 1
    s_add_u32 s78, s78, s79
    s_add_u32 s78, s78, s71
    s_lshl_b32 s78, s78, 10
    s_add_u32 s78, s78, {WS_O:#x}
    s_nop 1
    """)
    for rt in range(4):
        a(f"v_add_f32 v{DEN(rt)}, s{S_EPS}, v{DEN(rt)}")
    for rt in range(4):
        a(f"v_rcp_f32 v{DEN(rt)}, v{DEN(rt)}")
    OF = lambda rt: 144 + 4 * rt
    for rt in range(4):
        for et in range(2):
            for e in range(4):
                a(f"v_mul_f32 v{NUM(et,rt)+e}, v{NUM(et,rt)+e}, v{DEN(rt)}")
        for et in range(2):
            a(f"v_cvt_pk_bf16_f32 v{OF(rt)+2*et}, v{NUM(et,rt)}, v{NUM(et,rt)+1}")
            a(f"v_cvt_pk_bf16_f32 v{OF(rt)+2*et+1}, v{NUM(et,rt)+2}, v{NUM(et,rt)+3}")
        a(f"s_add_u32 s79, s78, {rt*32768}")
        a(f"buffer_store_dwordx4 {vr(OF(rt))}, v{VL}, {sr(R_WS)}, s79 offen sc1")
    a(f"v_mov_b32 v72, 1\ns_mov_b64 exec, 1\nds_add_u32 v{VF}, v72 offset:{F_RED}\ns_mov_b64 exec, -1")
    stamp(a, 13)
    a("s_waitcnt vmcnt(0)")
    flag_off(2, S_MT, S_HQ, 82, a)
    a(f"s_lshl_b32 s83, s{S_WAVE}, 2")
    signal(a, 82, ("83", ), TMP)
    stamp(a, 6)

    vm = VM(a)
    srd(a, R_A, P_X, 4 << 20)
    srd(a, R_B, P_OUT, 4 << 20)
    ACC = lambda nt, st: 4 * (2 * nt + st)
    OR = 32
    PD = 6
    WF = [80, 96]
    XR = 112
    GR = 128
    WA = 132
    VX = 140
    a(f"""
    v_and_b32 v1, 15, v{LANE}
    v_lshrrev_b32 v2, 4, v{LANE}
    s_lshl_b32 s73, s{S_MT3}, 7
    s_lshl_b32 s74, s{S_WAVE}, 5
    s_add_u32 s73, s73, s74
    v_add_u32 v3, s73, v1
    v_lshlrev_b32 v4, 11, v3
    v_lshlrev_b32 v5, 4, v2
    v_add_u32 v4, v4, v5
    s_lshl_b32 s74, s{S_NT3}, 7
    v_add_u32 v{VX}, s74, v4
    v_add_u32 v{VX+1}, 0x8000, v{VX}
    v_lshlrev_b32 v3, 2, v3
    s_mov_b32 s75, {WS_G:#x}
    """)
    for st in range(2):
        for ntp in range(2):
            a(f"buffer_load_dwordx4 {vr(XR+8*st+4*ntp)}, v{VX+st}, {sr(R_A)}, 0 offen offset:{64*ntp}")
    a(f"buffer_load_dword v{GR}, v3, {sr(R_WS)}, s75 offen sc1")
    a(f"buffer_load_dword v{GR+1}, v3, {sr(R_WS)}, s75 offen offset:64 sc1")
    a(f"""
    v_bfe_u32 v3, v{LANE}, 2, 2
    v_lshlrev_b32 v4, 2, v2
    v_add_u32 v4, v4, v3
    v_lshlrev_b32 v5, 7, v4
    v_lshrrev_b32 v4, 1, v4
    v_and_b32 v4, 3, v4
    v_lshlrev_b32 v4, 1, v4
    v_bfe_u32 v6, v{LANE}, 1, 1
    v_and_b32 v7, 1, v{LANE}
    v_lshlrev_b32 v7, 3, v7
    v_add_u32 v5, v5, v7
    """)
    for nt in range(4):
        a(f"v_or_b32 v7, {2*nt}, v6")
        a("v_xor_b32 v7, v7, v4")
        a("v_lshlrev_b32 v7, 4, v7")
        a(f"v_add_u32 v{WA+nt}, v5, v7")
    for nt in range(4):
        a(f"v_add_u32 v{WA+4+nt}, 65536, v{WA+nt}")
    a(f"""
    s_lshl_b32 s78, s{S_MT3}, 12
    s_add_u32 s78, s78, {WS_FL + 2*65536:#x}
    """)
    a("s_barrier")
    stamp(a, 8)
    poll_lines(a, VP, 78, 4, VP + 2, 80, prods=FAST_PAIRS)
    stamp(a, 7)
    a(f"""
    s_lshl_b32 s73, s{S_MT3}, 3
    s_lshl_b32 s74, s{S_WAVE}, 1
    s_add_u32 s73, s73, s74
    s_lshl_b32 s73, s73, 15
    s_add_u32 s73, s73, {WS_O:#x}
    s_add_u32 s74, s73, 32768
    """)

    def oload(i):
        h = HEAD_ORDER[i]
        for st in range(2):
            a(f"s_add_u32 s75, s{73+st}, {(h//4)*4096}")
            a(f"buffer_load_dwordx4 {vr(OR+8*(i%PD)+4*st)}, v{VL}, {sr(R_WS)}, s75 offen offset:{(h%4)*1024} sc1")
            vm.issue(("o", i))

    def wreads(i, s):
        h = HEAD_ORDER[i]
        off = (h % 16) * 4096
        base = WA + 4 * (h // 16)
        r = []
        for nt in range(4):
            for t in range(2):
                r.append(f"ds_read_b64_tr_b16 {vr(WF[s]+4*nt+2*t,2)}, v{base+nt} offset:{off+t*2048}")
        return r

    NFAST = 2 * len(FAST_PAIRS)
    P2 = VP + 3
    for i in range(PD):
        oload(i)
    for x in wreads(0, 0):
        a(x)
    smask = sum(0xf << (4 * p) for p in SLOW_PAIRS)
    for i in range(32):
        s = i & 1
        if i == NFAST - PD - 6:
            a(f"buffer_load_dword v{P2}, v{VP}, {sr(R_WS)}, s78 offen sc1")
            vm.issue("p2")
        if i == NFAST - PD:
            vm.wait("p2")
            a(f"s_mov_b32 s80, {smask & 0xffffffff:#x}\ns_mov_b32 s81, {smask >> 32:#x}")
            a(f"v_cmp_eq_u32 vcc, s{S_NONCE}, v{P2}\ns_nop 3\ns_and_b64 vcc, vcc, s[80:81]\ns_cmp_eq_u64 vcc, s[80:81]\ns_cbranch_scc1 L_late_ok")
            poll_lines(a, VP, 78, 4, P2, 80, prods=SLOW_PAIRS)
            a.label("L_late_ok")
        vm.wait(("o", i))
        nxt = wreads(i + 1, s ^ 1) if i < 31 else []
        a("s_waitcnt lgkmcnt(0)")
        k = 0
        for nt in range(4):
            for st in range(2):
                c = "0" if i == 0 else vr(ACC(nt, st))
                a(mfma(ACC(nt, st), WF[s] + 4 * nt, OR + 8 * (i % PD) + 4 * st, c))
                if k < len(nxt):
                    a(nxt[k]); k += 1
        if i + PD < 32:
            oload(i + PD)
    stamp(a, 9)
    YR = 32
    a(f"""
    s_barrier
    v_bfe_u32 v64, v{LANE}, 2, 2
    v_lshrrev_b32 v65, 4, v{LANE}
    v_lshlrev_b32 v65, 2, v65
    v_add_u32 v64, v64, v65
    v_lshlrev_b32 v64, 8, v64
    v_and_b32 v65, 3, v{LANE}
    v_lshlrev_b32 v65, 3, v65
    v_add_u32 v64, v64, v65
    s_lshl_b32 s73, s{S_WAVE}, 6
    s_add_u32 s73, s73, {L_Y}
    v_add_u32 v64, s73, v64
    """)
    for nt in range(4):
        for st in range(2):
            a(f"ds_read_b64_tr_b16 {vr(YR+4*nt+2*st,2)}, v64 offset:{nt*4096+st*32}")
    for st in range(2):
        for ntp in range(2):
            b = XR + 8 * st + 4 * ntp
            a(f"v_permlane16_swap_b32 v{b}, v{b+2}")
            a(f"v_permlane16_swap_b32 v{b+1}, v{b+3}")
    a("s_nop 0")
    for st in range(2):
        for ntp in range(2):
            b = XR + 8 * st + 4 * ntp
            a(f"v_permlane32_swap_b32 v{b}, v{b+2}")
            a(f"v_permlane32_swap_b32 v{b+1}, v{b+3}")
    for st in range(2):
        a(f"v_sub_f32 v{GR+2+st}, 1.0, v{GR+st}")
    a("s_waitcnt lgkmcnt(0)")
    T = 66
    OUT = 80
    for st in range(2):
        for nt in range(4):
            ntp, odd = nt >> 1, nt & 1
            xr = XR + 8 * st + 4 * ntp + 2 * odd
            yr = YR + 4 * nt + 2 * st
            ac = ACC(nt, st)
            unpack(a, T, xr, 0); unpack(a, T + 1, xr, 1); unpack(a, T + 2, xr + 1, 0); unpack(a, T + 3, xr + 1, 1)
            unpack(a, T + 4, yr, 0); unpack(a, T + 5, yr, 1); unpack(a, T + 6, yr + 1, 0); unpack(a, T + 7, yr + 1, 1)
            for e in range(4):
                a(f"v_mul_f32 v{T+e}, v{T+e}, v{T+4+e}")
            for e in range(4):
                a(f"v_mul_f32 v{T+e}, v{T+e}, v{GR+2+st}")
            for e in range(4):
                a(f"v_fmac_f32 v{T+e}, v{ac+e}, v{GR+st}")
            o = OUT + 8 * st + 4 * ntp + 2 * odd
            a(f"v_cvt_pk_bf16_f32 v{o}, v{T}, v{T+1}")
            a(f"v_cvt_pk_bf16_f32 v{o+1}, v{T+2}, v{T+3}")
    a("s_nop 1")
    for st in range(2):
        for ntp in range(2):
            b = OUT + 8 * st + 4 * ntp
            a(f"v_permlane32_swap_b32 v{b}, v{b+2}")
            a(f"v_permlane32_swap_b32 v{b+1}, v{b+3}")
    a("s_nop 0")
    for st in range(2):
        for ntp in range(2):
            b = OUT + 8 * st + 4 * ntp
            a(f"v_permlane16_swap_b32 v{b}, v{b+2}")
            a(f"v_permlane16_swap_b32 v{b+1}, v{b+3}")
    for st in range(2):
        for ntp in range(2):
            a(f"buffer_store_dwordx4 {vr(OUT+8*st+4*ntp)}, v{VX+st}, {sr(R_B)}, 0 offen offset:{64*ntp}")
    stamp(a, 10)
    stamp_flush(a)
    a.label("L_end")
    a("s_endpgm")


HEADER = f"""; gated_mix: g * linear_attention(x) + (1 - g) * x * h3_conv(k, v) in one persistent launch.
; @launch grid=(256,1,1) block=(512,1,1) lds={LDS_BYTES}
.amdgcn_target "amdgcn-amd-amdhsa--gfx950"
.text
.globl {KNAME}
.p2align 8
.type {KNAME},@function
{KNAME}:
"""

DESC = f""".section .rodata,"a"
.p2align 6
.amdhsa_kernel {KNAME}
  .amdhsa_next_free_vgpr 256
  .amdhsa_next_free_sgpr 102
  .amdhsa_accum_offset 256
  .amdhsa_group_segment_fixed_size 0
  .amdhsa_kernarg_size 104
  .amdhsa_user_sgpr_count 2
  .amdhsa_user_sgpr_kernarg_segment_ptr 1
  .amdhsa_system_sgpr_workgroup_id_x 1
  .amdhsa_float_denorm_mode_32 3
.end_amdhsa_kernel
"""


def generate(cfg=None):
    global STAMPS
    cfg = cfg or {}
    STAMPS = cfg.get("stamps", 0)
    a = Asm()
    BARTL[0] = cfg.get("bartl", 0)
    CUR_ROLE[0] = "pro"
    gen_prologue(a, cfg)
    CUR_ROLE[0] = "ld"
    gen_loader(a, cfg)
    CUR_ROLE[0] = "pp"
    gen_prepass(a, cfg)
    CUR_ROLE[0] = "ld" if BARTL[0] else "conv"
    gen_conv(a, cfg)
    CUR_ROLE[0] = "comp"
    gen_compute(a, cfg)
    return HEADER + a.text() + DESC


if __name__ == "__main__":
    cfg = {}
    out = f"cdna_kernels/{NAME}.s"
    for arg in sys.argv[1:]:
        if arg.startswith("-o"):
            out = arg[2:]
        else:
            k, v = arg.split("=")
            cfg[k] = int(v)
    open(out, "w").write(generate(cfg))
    print("wrote", out)
```

```python
import sys

NAME = "gated_mix__linear_attn_block__ssm_conv_h3__prompt"
KNAME = NAME + "_kernel"

WS_O = 0
WS_UT = 4 << 20
WS_YT = 8 << 20
WS_KVP = 12 << 20
WS_ZP = 14 << 20
WS_G = (14 << 20) + (1 << 19)
WS_FL = 15 << 20
WS_SIZE = 32 << 20
WS_TS = 24 << 20

SLOT = 40960
NS = 4
L_U = 122880
U_CH = 4608
COPY = 4160
H_CH = 4 * COPY
L_Y = 131072
L_X = 147456
L_KVX = L_X
L_ZX = L_X + 8192
L_OX = L_X + 8448
L_FLG = L_X + 12544
LDS_BYTES = 163840
F_KVX, F_OX, F_CONV, F_U, F_RED, F_S2, F_NONCE = 0, 8, 24, 28, 32, 36, 48

LOG2E = 0x3FB8AA3B
EPS6 = 0x358637BD
SPIN_MAX = 200000

P_X, P_WQKV, P_WO, P_K, P_V, P_SK, P_H = 16, 18, 20, 24, 26, 28, 30
P_D, P_GW, P_OUT, P_DBG, P_WS = 32, 34, 36, 38, 40
R_WS = 44
R_A, R_B, R_C, R_D = 48, 52, 56, 60
S_WAVE, S_MT, S_HP, S_ROT, S_NONCE = 64, 65, 66, 67, 68
S_MT3, S_NT3 = 69, 70
S_URDY = 42
S_HQ = 43
LANE = 250

STAMPS = 0
CUR_ROLE = ['']
BARTL = [0]


class Asm:
    def __init__(self):
        self.lines = []
        self.nlab = 0

    def __call__(self, s):
        for ln in s.split("\n"):
            ln = ln.strip()
            if ln:
                self.lines.append(ln if ln.endswith(":") else "  " + ln)

    def label(self, s):
        self.lines.append(s + ":")

    def raw(self, s):
        self.lines.append(s)

    def newlab(self, p):
        self.nlab += 1
        return f"{p}_{self.nlab}"

    def text(self):
        return "\n".join(self.lines) + "\n"


class VM:
    def __init__(self, a):
        self.a = a
        self.q = []

    def issue(self, tag, n=1):
        self.q += [tag] * n

    def wait(self, tag):
        if tag not in self.q:
            return
        idx = max(i for i, t in enumerate(self.q) if t == tag)
        n = len(self.q) - 1 - idx
        self.a(f"s_waitcnt vmcnt({min(n, 63)})")
        self.q = self.q[idx + 1:]

    def drain(self):
        self.a("s_waitcnt vmcnt(0)")
        self.q = []


def vr(b, n=4):
    return f"v[{b}:{b+n-1}]"


def sr(b, n=4):
    return f"s[{b}:{b+n-1}]"


def srd(a, dst, src, size):
    a(f"s_mov_b32 s{dst}, s{src}")
    a(f"s_and_b32 s{dst+1}, s{src+1}, 0xffff")
    a(f"s_mov_b32 s{dst+2}, {size:#x}")
    a(f"s_mov_b32 s{dst+3}, 0x20000")


NOSTAMP = set()


def stamp(a, idx):
    if STAMPS and (idx, CUR_ROLE[0]) not in NOSTAMP and not (CUR_ROLE[0] == "ld" and BARTL[0] and idx > 0):
        a("s_memtime s[100:101]" if STAMPS == 2 else "s_memrealtime s[100:101]")
        a("s_waitcnt lgkmcnt(0)")
        a(f"s_mov_b32 s{84+idx}, s100")


def stamp_flush(a):
    if STAMPS:
        a("s_mov_b64 exec, 1")
        a(f"s_lshl_b32 s98, s2, 3\ns_add_u32 s98, s98, s{S_WAVE}\ns_lshl_b32 s98, s98, 6\ns_add_u32 s98, s98, {WS_TS:#x}")
        for i in range(14):
            a(f"v_mov_b32 v{232+i}, s{84+i}")
        a("v_mov_b32 v231, 0")
        for j in range(4):
            a(f"buffer_store_dwordx4 {vr(232+4*j)}, v231, {sr(R_WS)}, s98 offen offset:{16*j}")


FAST_PAIRS = [p for p in range(16) if p & 3 != 3]
SLOW_PAIRS = [p for p in range(16) if p & 3 == 3]
HEAD_ORDER = [2 * p + i for p in FAST_PAIRS + SLOW_PAIRS for i in range(2)]


def mfma(d, x, y, c):
    return f"v_mfma_f32_16x16x32_bf16 {vr(d)}, {vr(x)}, {vr(y)}, {c}"


def unpack(a, dst, src, half):
    if half == 0:
        a(f"v_lshlrev_b32 v{dst}, 16, v{src}")
    else:
        a(f"v_and_b32 v{dst}, 0xffff0000, v{src}")


def weave(a, mf, cur_tags, nxt, start=0, hooks=None, waits=None):
    queue = list(cur_tags)
    waits = sorted(waits) if waits is not None else list(range(len(mf)))
    done = -1
    k = 0
    for i, (txt, need) in enumerate(mf):
        if i in waits:
            nxtw = min([w for w in waits if w > i], default=len(mf))
            needs = [t for _, nd in mf[i:nxtw] for t in nd]
            last = max([cur_tags.index(t) for t in needs], default=-1)
            if last > done:
                n = len(queue) - 1 - last
                a(f"s_waitcnt lgkmcnt({min(n, 15)})")
                done = last if n <= 15 else len(queue) - 1 - 15
        a(txt)
        if hooks and i in hooks:
            a(hooks[i])
            if "lgkmcnt(0)" in hooks[i]:
                done = len(queue) - 1
        if i >= start and k < len(nxt):
            a(nxt[k][0])
            queue.append(("n", k))
            k += 1
    assert k == len(nxt)


def phi(a, regs, tmp, s_l2e, s_eps):
    n = len(regs)
    assert all(regs[i] % 2 == 0 and regs[i + 1] == regs[i] + 1 for i in range(0, n, 2)) and tmp % 2 == 0
    for i in range(0, n, 2):
        a(f"v_pk_mul_f32 {vr(tmp+i,2)}, {vr(regs[i],2)}, s[{s_l2e}:{s_l2e+1}]")
    for i in range(n):
        a(f"v_exp_f32 v{tmp+i}, v{tmp+i} clamp")
    for i in range(0, n, 2):
        a(f"v_pk_add_f32 {vr(regs[i],2)}, {vr(regs[i],2)}, s[{s_eps+2}:{s_eps+3}]")
    for i in range(n):
        a(f"v_max_f32 v{regs[i]}, v{regs[i]}, v{tmp+i}")
    for i in range(0, n, 2):
        a(f"v_pk_add_f32 {vr(regs[i],2)}, {vr(regs[i],2)}, s[{s_eps}:{s_eps+1}]")


def flag_off(typ, s_group, s_prod, dst, a):
    a(f"s_lshl_b32 s{dst}, s{s_group}, 4")
    a(f"s_add_u32 s{dst}, s{dst}, s{s_prod}")
    a(f"s_lshl_b32 s{dst}, s{dst}, 8")
    a(f"s_add_u32 s{dst}, s{dst}, {WS_FL + typ*65536:#x}")


def signal(a, s_off, idx_bytes, vt, drain=False):
    a(f"v_mov_b32 v{vt}, s{S_NONCE}")
    a(f"v_mov_b32 v{vt+1}, {idx_bytes}" if isinstance(idx_bytes, int) else f"v_mov_b32 v{vt+1}, s{idx_bytes[0]}")
    if drain:
        a("s_waitcnt vmcnt(0)")
    a("s_mov_b64 exec, 1")
    a(f"buffer_store_dword v{vt}, v{vt+1}, {sr(R_WS)}, s{s_off} offen sc1")
    a("s_mov_b64 exec, -1")


def poll_lines(a, v_off, s_base, nd, vt, st, prods=range(16)):
    lab = a.newlab("L_poll")
    done = a.newlab("L_pdone")
    mask = sum(((1 << nd) - 1) << (4 * i) for i in prods)
    a(f"s_mov_b32 s{st}, {mask & 0xffffffff:#x}")
    a(f"s_mov_b32 s{st+1}, {mask >> 32:#x}")
    a(f"s_mov_b32 s{st+2}, 0")
    a.label(lab)
    a(f"buffer_load_dword v{vt}, v{v_off}, {sr(R_WS)}, s{s_base} offen sc1")
    a("s_waitcnt vmcnt(0)")
    a(f"v_cmp_eq_u32 vcc, s{S_NONCE}, v{vt}")
    a(f"s_add_u32 s{st+2}, s{st+2}, 1")
    a(f"s_and_b64 vcc, vcc, s[{st}:{st+1}]")
    a(f"s_cmp_eq_u64 vcc, s[{st}:{st+1}]")
    a(f"s_cbranch_scc1 {done}")
    a(f"s_cmp_lt_u32 s{st+2}, {SPIN_MAX}")
    a(f"s_cbranch_scc1 {lab}")
    a.label(done)


def lds_poll(a, v_addr, off, target, vt, st):
    lab = a.newlab("L_lp")
    done = a.newlab("L_lpd")
    a(f"s_mov_b32 s{st+1}, 0")
    a.label(lab)
    a(f"ds_read_b32 v{vt}, v{v_addr} offset:{off}")
    a("s_waitcnt lgkmcnt(0)")
    a(f"v_readfirstlane_b32 s{st}, v{vt}")
    a(f"s_add_u32 s{st+1}, s{st+1}, 1")
    a(f"s_cmp_ge_u32 s{st}, {target}")
    a(f"s_cbranch_scc1 {done}")
    a(f"s_cmp_lt_u32 s{st+1}, {SPIN_MAX*16}")
    a(f"s_cbranch_scc1 {lab}")
    a.label(done)


def gen_prologue(a, cfg):
    if cfg.get("map", 2) == 0:
        MAPA, MAPB = "s_and_b32 s74, s73, 7", "s_lshr_b32 s74, s73, 3"
    elif cfg.get("map", 2) == 1:
        MAPA, MAPB = "s_lshr_b32 s74, s73, 2", "s_and_b32 s74, s73, 3"
    else:
        MAPA, MAPB = "s_and_b32 s74, s73, 7", "s_lshr_b32 s74, s73, 3\ns_sub_u32 s74, 3, s74"
    a(f"""
    s_cmp_ge_u32 s2, 256
    s_cbranch_scc1 L_end
    s_load_dwordx16 s[16:31], s[0:1], 0
    s_load_dwordx8 s[32:39], s[0:1], 64
    s_load_dwordx2 s[40:41], s[0:1], 96
    v_lshrrev_b32 v1, 6, v0
    v_and_b32 v{LANE}, 63, v0
    s_and_b32 s72, s2, 7
    v_readfirstlane_b32 s{S_WAVE}, v1
    s_lshr_b32 s73, s2, 3
    s_and_b32 s{S_MT}, s72, 1
    s_lshl_b32 s{S_MT}, s{S_MT}, 3
    {MAPA}
    s_add_u32 s{S_MT}, s{S_MT}, s74
    s_lshr_b32 s{S_HP}, s72, 1
    s_lshl_b32 s{S_HP}, s{S_HP}, 2
    {MAPB}
    s_add_u32 s{S_HP}, s{S_HP}, s74
    s_and_b32 s{S_MT3}, s72, 3
    s_lshl_b32 s{S_MT3}, s{S_MT3}, 2
    s_and_b32 s74, s73, 3
    s_add_u32 s{S_MT3}, s{S_MT3}, s74
    s_lshr_b32 s{S_NT3}, s72, 2
    s_lshl_b32 s{S_NT3}, s{S_NT3}, 3
    s_lshr_b32 s74, s73, 2
    s_add_u32 s{S_NT3}, s{S_NT3}, s74
    """)
    a(f"s_add_u32 s{S_HQ}, s{S_HP}, {cfg.get('hq', 4)}\ns_and_b32 s{S_HQ}, s{S_HQ}, 15")
    rot = cfg.get("rot", 2)
    if rot == 0:
        a(f"s_mov_b32 s{S_ROT}, 0")
    elif rot == 1:
        a(f"s_lshl_b32 s{S_ROT}, s72, 1")
    elif rot == 2:
        a(f"s_add_u32 s{S_ROT}, s{S_MT}, s{S_HP}\ns_and_b32 s{S_ROT}, s{S_ROT}, 15")
    elif rot == 3:
        a(f"s_lshl_b32 s{S_ROT}, s{S_HP}, 1\ns_add_u32 s{S_ROT}, s{S_ROT}, s{S_MT}\ns_lshl_b32 s{S_ROT}, s{S_ROT}, 1\ns_and_b32 s{S_ROT}, s{S_ROT}, 15")
    elif rot == 4:
        a(f"s_lshl_b32 s{S_ROT}, s{S_HP}, 1\ns_add_u32 s{S_ROT}, s{S_ROT}, s{S_MT}\ns_lshl_b32 s{S_ROT}, s{S_ROT}, 1\ns_lshr_b32 s74, s{S_MT}, 3\ns_add_u32 s{S_ROT}, s{S_ROT}, s74\ns_and_b32 s{S_ROT}, s{S_ROT}, 15")
    if STAMPS:
        for i in range(14):
            a(f"s_mov_b32 s{84+i}, 0")
    a("s_waitcnt lgkmcnt(0)")
    srd(a, R_WS, P_WS, WS_SIZE)
    stamp(a, 0)
    a(f"""
    s_cmp_lt_u32 s{S_WAVE}, 4
    s_cbranch_scc1 L_compute
    s_cmp_ge_u32 s{S_WAVE}, 6
    s_cbranch_scc1 L_prepass
    """)


def gen_loader(a, cfg):
    srd(a, R_A, P_X, 4 << 20)
    srd(a, R_B, P_WQKV, 6 << 20)
    if cfg.get("prio", 0) & 1:
        a("s_setprio 2")
    XG, WG = 1, 3
    a(f"""
    s_sub_u32 s71, s{S_WAVE}, 4
    v_lshrrev_b32 v5, 3, v{LANE}
    v_and_b32 v6, 7, v{LANE}
    v_lshrrev_b32 v7, 4, v{LANE}
    v_xor_b32 v8, v6, v7
    v_lshlrev_b32 v8, 4, v8
    v_lshlrev_b32 v9, 11, v5
    v_add_u32 v{XG}, v8, v9
    v_xor_b32 v{XG+1}, 64, v{XG}
    v_and_b32 v7, 1, v7
    v_lshlrev_b32 v7, 1, v7
    v_xor_b32 v8, v6, v7
    v_lshlrev_b32 v8, 4, v8
    v_mul_u32_u24 v9, 6144, v5
    v_add_u32 v{WG}, v8, v9
    v_xor_b32 v{WG+1}, 64, v{WG}
    s_lshl_b32 s72, s{S_MT}, 18
    s_lshl_b32 s73, s71, 17
    s_add_u32 s72, s72, s73
    s_lshl_b32 s73, s71, 13
    s_lshl_b32 s74, s71, 12
    s_add_u32 s74, s74, 16384
    s_lshl_b32 s75, s{S_HP}, 7
    s_mul_i32 s76, s71, 196608
    s_add_u32 s75, s75, s76
    s_lshl_b32 s4, s{S_HQ}, 7
    s_add_u32 s4, s4, s76
    """)
    first_slot = NS - 1

    def issue():
        a(f"""
        s_add_u32 s78, s{S_ROT}, s76
        s_and_b32 s78, s78, 15
        s_lshl_b32 s79, s78, 7
        s_add_u32 s79, s79, s72
        s_mul_i32 s80, s78, 393216
        s_add_u32 s5, s80, s4
        s_add_u32 s80, s80, s75
        s_add_u32 s81, s77, s73
        s_add_u32 s82, s77, s74
        """)
        for i in range(8):
            a(f"s_add_u32 m0, s81, {i*1024}")
            a(f"s_add_u32 s83, s79, {i*16384}")
            a(f"buffer_load_dwordx4 v{XG + (i & 1)}, {sr(R_A)}, s83 offen lds")
        for seg in range(3):
            for i in range(4):
                a(f"s_add_u32 m0, s82, {seg*8192 + i*1024}")
                a(f"s_add_u32 s83, {'s5' if seg == 0 else 's80'}, {seg*2048 + i*49152}")
                a(f"buffer_load_dwordx4 v{WG + (i & 1)}, {sr(R_B)}, s83 offen lds")
        a(f"""
        s_add_u32 s76, s76, 1
        s_add_u32 s77, s77, {SLOT}
        s_cmp_eq_u32 s77, {NS*SLOT}
        s_cselect_b32 s77, 0, s77
        """)

    a(f"s_mov_b32 s76, 0\ns_mov_b32 s77, {first_slot*SLOT}")
    stamp(a, 1)
    prof = 0
    a.label("L_ld_loop")
    issue()
    a("""
    s_cmp_lt_u32 s76, 2
    s_cbranch_scc1 L_ld_loop
    s_cmp_eq_u32 s76, 3
    s_cbranch_scc1 L_ld_loop
    s_cmp_eq_u32 s76, 16
    s_cbranch_scc1 L_ld_done
    s_cmp_eq_u32 s76, 2
    s_cbranch_scc1 L_ld_first
    s_waitcnt vmcnt(40)
    s_barrier
    """)
    if cfg.get("bartl", 0):
        a("s_memrealtime s[100:101]\ns_waitcnt lgkmcnt(0)")
        for b in range(1, 13):
            a(f"s_cmp_eq_u32 s76, {b+3}\ns_cselect_b32 s{84+b}, s100, s{84+b}")
    a("""
    s_branch L_ld_loop
    L_ld_first:
    s_waitcnt vmcnt(20)
    s_barrier
    """)
    if cfg.get("ldtl", 0): stamp(a, 8)
    a("s_branch L_ld_loop")
    a.label("L_ld_done")
    if cfg.get("ldtl", 0): stamp(a, 10)
    a("s_waitcnt vmcnt(40)\ns_barrier")
    if cfg.get("ldtl", 0): stamp(a, 11)
    nh = h_loads(a)
    if cfg.get("wopf", 1):
        srd(a, R_A, P_WO, 2 << 20)
        a(f"""
        s_and_b32 s4, s{S_MT3}, 3
        s_lshl_b32 s4, s4, 1
        s_add_u32 s4, s4, s71
        s_lshl_b32 s4, s4, 18
        s_lshl_b32 s5, s{S_NT3}, 7
        s_add_u32 s4, s4, s5
        s_add_u32 s5, s4, {64*2048}
        v_lshlrev_b32 v77, 11, v{LANE}
        buffer_load_dword v78, v77, {sr(R_A)}, s4 offen
        buffer_load_dword v79, v77, {sr(R_A)}, s5 offen
        """)
        nh += 2
    a(f"s_waitcnt vmcnt({20+nh})\ns_barrier")
    if cfg.get("ldtl", 0): stamp(a, 12)
    a(f"s_waitcnt vmcnt({nh})\ns_barrier")
    if cfg.get("ldtl", 0): stamp(a, 13)
    stamp(a, 2)
    a("s_branch L_conv")


HD, HE, HFX, HDV = 48, 64, 72, 73


def h_loads(a):
    srd(a, R_C, P_H, 4 << 20)
    srd(a, R_D, P_D, 2048)
    a(f"""
    s_lshl_b32 s4, s2, 2
    s_add_u32 s4, s4, s{S_WAVE}
    s_sub_u32 s4, s4, 4
    s_lshl_b32 s5, s4, 12
    s_lshl_b32 s6, s4, 1
    v_lshlrev_b32 v74, 4, v{LANE}
    v_lshrrev_b32 v75, 4, v{LANE}
    v_and_b32 v76, 15, v{LANE}
    v_add_u32 v75, v75, v76
    v_subrev_u32 v75, 15, v75
    v_max_i32 v75, 0, v75
    v_lshlrev_b32 v75, 1, v75
    v_mov_b32 v76, 0
    """)
    for j in range(4):
        a(f"buffer_load_dwordx4 {vr(HD+4*j)}, v74, {sr(R_C)}, s5 offen offset:{j*1024}")
        a(f"buffer_load_dwordx2 {vr(HE+2*j,2)}, v74, {sr(R_C)}, s5 offen offset:{j*1024+16}")
    a(f"buffer_load_ushort v{HFX}, v75, {sr(R_C)}, s5 offen")
    a(f"buffer_load_ushort v{HDV}, v76, {sr(R_D)}, s6 offen")
    return 10


def u_loads(a):
    a(f"""
    s_lshl_b32 s82, s2, 2
    s_lshl_b32 s83, s71, 1
    s_add_u32 s82, s82, s83
    s_lshl_b32 s82, s82, 12
    s_add_u32 s82, s82, {WS_UT:#x}
    s_add_u32 s83, s82, 4096
    """)
    for c in range(2):
        for j in range(4):
            a(f"buffer_load_dwordx4 {vr(16+16*c+4*j)}, v8, {sr(R_WS)}, s{82+c} offen offset:{j*1024} sc1")


def gen_prepass(a, cfg):
    a.label("L_prepass")
    vm = VM(a)
    srd(a, R_A, P_K, 4 << 20)
    srd(a, R_B, P_V, 4 << 20)
    srd(a, R_C, P_X, 4 << 20)
    KR, VR, WT, GX, GW = 16, 60, 92, 108, 140
    KA, KB, SKA, GA, UA = 2, 3, 4, 5, 6
    T = 152
    a(f"s_sub_u32 s71, s{S_WAVE}, 6")
    srd(a, R_D, P_DBG, 256)
    a(f"""
    s_cmp_lg_u32 s2, 0
    s_cbranch_scc1 L_notag
    s_cmp_lg_u32 s71, 0
    s_cbranch_scc1 L_notag
    s_memrealtime s[72:73]
    s_waitcnt lgkmcnt(0)
    s_or_b32 s72, s72, 1
    v_mov_b32 v13, s72
    v_mov_b32 v14, 0
    s_mov_b64 exec, 1
    buffer_store_dword v13, v14, {sr(R_D)}, 0 offen sc1
    s_mov_b64 exec, -1
    """)
    a.label("L_notag")
    pf = cfg.get("pf", 0)
    PFA, PFD = 246, 244
    if pf:
        a(f"""
        s_cmp_eq_u32 s71, 0
        s_cbranch_scc0 L_pf_w
        """)
        srd(a, 8, P_X, 4 << 20)
        srd(a, 12, P_H, 4 << 20)
        a(f"""
        v_lshrrev_b32 v8, 3, v{LANE}
        v_lshlrev_b32 v8, 11, v8
        v_and_b32 v9, 7, v{LANE}
        v_lshlrev_b32 v9, 6, v9
        v_add_u32 v8, v8, v9
        s_lshl_b32 s72, s2, 14
        v_add_u32 v{PFA}, s72, v8
        s_mov_b32 s6, 512
        s_mov_b32 s7, 0
        s_lshl_b32 s5, s2, 14
        s_branch L_pf_go
        L_pf_w:
        """)
        srd(a, 8, P_WQKV, 6 << 20)
        srd(a, 12, P_WO, 2 << 20)
        a(f"""
        v_and_b32 v8, 31, v{LANE}
        v_min_u32 v8, 23, v8
        v_lshlrev_b32 v8, 6, v8
        v_lshrrev_b32 v9, 5, v{LANE}
        v_mul_u32_u24 v9, 393216, v9
        v_add_u32 v8, v8, v9
        s_lshr_b32 s72, s2, 2
        s_mul_i32 s72, s72, 6144
        s_and_b32 s73, s2, 3
        s_mul_i32 s73, s73, 1536
        s_add_u32 s72, s72, s73
        v_add_u32 v{PFA}, s72, v8
        s_mov_b32 s6, 1572864
        s_mov_b32 s7, 786432
        s_lshl_b32 s5, s2, 13
        L_pf_go:
        """)

    def prefetch(group):
        if not pf:
            return
        a(f"s_mul_i32 s4, s6, {group}")
        a(f"buffer_load_dword v{PFD}, v{PFA}, s[8:11], s4 offen")
        a("s_add_u32 s4, s4, s7")
        a(f"buffer_load_dword v{PFD+1}, v{PFA}, s[8:11], s4 offen")
        vm.issue("pf", 2)

    def prefetch_late():
        if not pf:
            return
        a(f"v_lshlrev_b32 v{PFA}, 6, v{LANE}")
        for j in range(4):
            a(f"s_add_u32 s4, s5, {j*4096}")
            a(f"buffer_load_dword v{PFD+(j&1)}, v{PFA}, s[12:15], s4 offen")
        vm.issue("pf", 4)

    prefetch(1)
    if cfg.get("c3pf", 0):
        srd(a, 8, P_WQKV, 6 << 20)
        a(f"""
        s_cmp_eq_u32 s71, 0
        s_cbranch_scc0 L_c3_skip
        s_lshr_b32 s4, s{S_HP}, 2
        s_and_b32 s5, s4, 1
        s_lshl_b32 s6, s4, 2
        s_add_u32 s6, s6, 3
        s_lshl_b32 s7, s5, 2
        s_add_u32 s6, s6, s7
        s_and_b32 s6, s6, 15
        s_cmp_eq_u32 s5, 0
        s_cselect_b32 s7, 1, 0
        s_lshl_b32 s6, s6, 7
        v_and_b32 v8, 31, v{LANE}
        s_lshr_b32 s4, s2, 3
        s_lshl_b32 s4, s4, 5
        v_add_u32 v8, s4, v8
        v_mul_u32_u24 v8, 6144, v8
        v_lshrrev_b32 v9, 5, v{LANE}
        v_add_u32 v9, 1, v9
        v_mul_lo_u32 v9, v9, s7
        v_lshlrev_b32 v9, 11, v9
        v_add_u32 v8, v8, v9
        buffer_load_dword v244, v8, s[8:11], s6 offen
        L_c3_skip:
        """)
        vm.issue("pf")
    a(f"""
    v_and_b32 v8, 7, v{LANE}
    v_lshrrev_b32 v9, 3, v{LANE}
    s_lshl_b32 s72, s71, 3
    s_lshl_b32 s73, s{S_MT}, 4
    s_add_u32 s72, s72, s73
    v_add_u32 v9, s72, v9
    s_lshl_b32 s73, s{S_HP}, 6
    v_lshlrev_b32 v10, 3, v8
    v_add_u32 v10, s73, v10
    v_lshlrev_b32 v11, 14, v9
    v_lshlrev_b32 v12, 1, v10
    v_add_u32 v{KB}, v11, v12
    v_subrev_u32 v{KA}, 6144, v{KB}
    v_lshlrev_b32 v{SKA}, 3, v10
    v_lshlrev_b32 v{GA}, 5, v{LANE}
    v_lshlrev_b32 v11, 12, v10
    v_lshlrev_b32 v12, 4, v9
    v_add_u32 v{UA}, v11, v12
    s_mov_b32 s74, 4096
    s_mov_b32 s75, 8192
    s_mov_b32 s76, 12288
    s_lshl_b32 s77, s{S_MT}, 7
    s_lshl_b32 s78, s{S_HP}, 3
    s_add_u32 s77, s77, s78
    s_lshl_b32 s78, s71, 2
    s_add_u32 s77, s77, s78
    s_lshl_b32 s78, s77, 11
    """)
    srd(a, 8, P_SK, 8192)
    srd(a, 12, P_GW, 2048)
    soff = ["0", "s74", "s75", "s76"]

    def rowload(dst, va, srdn, i):
        a(f"buffer_load_dwordx4 {vr(dst)}, v{va}, {sr(srdn)}, {soff[i//2]} offen offset:{(i%2)*2048} {'nt' if cfg.get('ntpre', 1) else ''}")
        vm.issue("pre")

    loads = []
    for i in range(3):
        loads.append(lambda i=i: rowload(KR + 4 * i, KA, R_A, i))
    for i in range(8):
        loads.append(lambda i=i: rowload(KR + 12 + 4 * i, KB, R_A, i))
    for i in range(8):
        loads.append(lambda i=i: rowload(VR + 4 * i, KB, R_B, i))

    def wload(i):
        a(f"buffer_load_dwordx4 {vr(WT+4*i)}, v{SKA}, s[8:11], 0 offen offset:{16*i}")
        vm.issue("pre")
    for i in range(4):
        loads.append(lambda i=i: wload(i))

    def gload(r, i):
        a(f"s_add_u32 s79, s78, {r*2048}")
        a(f"buffer_load_dwordx4 {vr(GX+8*r+4*i)}, v{GA}, {sr(R_C)}, s79 offen offset:{16*i}")
        vm.issue("gate")

    def gwload(i):
        a(f"buffer_load_dwordx4 {vr(GW+4*i)}, v{GA}, s[12:15], 0 offen offset:{16*i}")
        vm.issue("gate")
    gloads = [lambda r=r, i=i: gload(r, i) for r in range(4) for i in range(2)] + [lambda i=i: gwload(i) for i in range(2)]

    def tagload():
        a(f"v_mov_b32 v14, 0\nbuffer_load_dword v15, v14, {sr(R_D)}, 0 offen sc1")
        vm.issue("tag")

    def channel(j):
        if cfg.get("exp", 0) & 4:
            return
        dw, half = j >> 1, j & 1
        W, Kf, Of, P = T, T + 4, T + 16, T + 24
        for tau in range(4):
            unpack(a, W + tau, WT + 2 * j + (tau >> 1), tau & 1)
        for i in range(11):
            unpack(a, Kf + i, KR + 4 * i + dw, half)
        for i in range(8):
            a(f"v_mul_f32 v{Of+i}, v{W+3}, v{Kf+i}")
        for tau in (2, 1, 0):
            for i in range(8):
                a(f"v_fmac_f32 v{Of+i}, v{W+tau}, v{Kf+i+3-tau}")
        for i in range(8):
            unpack(a, Kf + i, VR + 4 * i + dw, half)
        for i in range(8):
            a(f"v_mul_f32 v{Of+i}, v{Of+i}, v{Kf+i}")
        P = P + 4 * (j & 1)
        for m in range(4):
            a(f"v_cvt_pk_bf16_f32 v{P+m}, v{Of+7-2*m}, v{Of+6-2*m}")
        a(f"s_mov_b32 s80, {WS_UT + j*4096:#x}")
        a(f"buffer_store_dwordx4 {vr(P)}, v{UA}, {sr(R_WS)}, s80 offen sc1")
        vm.issue("ut")


    def gate():
        vm.wait("gate")
        Z = T + 32
        for r in range(4):
            a(f"v_mov_b32 v{Z+r}, 0")
        for i in range(8):
            for r in range(4):
                a(f"v_dot2_f32_bf16 v{Z+r}, v{GX+8*r+i}, v{GW+i}, v{Z+r}")
        for ctl in ("row_shr:1 row_mask:0xf", "row_shr:2 row_mask:0xf", "row_shr:4 row_mask:0xf",
                    "row_shr:8 row_mask:0xf", "row_bcast:15 row_mask:0xa", "row_bcast:31 row_mask:0xc"):
            a("s_nop 1")
            for r in range(4):
                a(f"v_add_f32_dpp v{Z+r}, v{Z+r}, v{Z+r} {ctl} bank_mask:0xf")
        a(f"s_mov_b32 s80, {LOG2E ^ 0x80000000:#x}")
        for r in range(4):
            a(f"v_mul_f32 v{Z+r}, s80, v{Z+r}")
        for r in range(4):
            a(f"v_exp_f32 v{Z+r}, v{Z+r}")
        a("s_nop 0")
        for r in range(4):
            a(f"v_add_f32 v{Z+r}, 1.0, v{Z+r}")
        for r in range(4):
            a(f"v_rcp_f32 v{Z+r}, v{Z+r}")
        a(f"""
        s_lshl_b32 s80, s77, 2
        s_add_u32 s80, s80, {WS_G:#x}
        v_mov_b32 v{Z+4}, 0
        v_cmp_eq_u32 vcc, 63, v{LANE}
        s_and_saveexec_b64 s[82:83], vcc
        buffer_store_dwordx4 {vr(Z)}, v{Z+4}, {sr(R_WS)}, s80 offen sc1
        s_mov_b64 exec, s[82:83]
        """)
        vm.issue("g")

    def tagcheck():
        lab = a.newlab("L_tag")
        vm.wait("tag")
        a(f"v_readfirstlane_b32 s{S_NONCE}, v15\ns_mov_b32 s80, 0\ns_cmp_lg_u32 s{S_NONCE}, 0\ns_cbranch_scc1 L_tagok")
        a.label(lab)
        a(f"""
        buffer_load_dword v15, v14, {sr(R_D)}, 0 offen sc1
        s_waitcnt vmcnt(0)
        v_readfirstlane_b32 s{S_NONCE}, v15
        s_add_u32 s80, s80, 1
        s_cmp_lg_u32 s{S_NONCE}, 0
        s_cbranch_scc1 L_tagok
        s_cmp_lt_u32 s80, {SPIN_MAX}
        s_cbranch_scc1 {lab}
        """)
        a.label("L_tagok")

    def publish():
        vm.drain()
        flag_off(0, S_HP, S_MT, 80, a)
        a("s_lshl_b32 s81, s71, 2")
        signal(a, 80, ("81", ), 8)

    def some(lst, lo, hi):
        return lambda: [f() for f in lst[lo:hi]]
    wait_pre = lambda: vm.wait("pre")
    ch = lambda j: (lambda: channel(j))
    sched = cfg.get("sched", 1)
    if sched == 0:
        plan = {-1: [some(loads, 0, 23), some(gloads, 0, 10), tagload],
                2: [wait_pre, ch(0), ch(1)], 3: [ch(2), ch(3)], 4: [ch(4), ch(5)], 5: [ch(6), ch(7)],
                6: [gate], 7: [tagcheck], 8: [publish]}
    elif sched == 1:
        plan = {1: [some(loads, 0, 11)], 2: [some(loads, 11, 23)], 3: [some(gloads, 0, 10), tagload],
                4: [wait_pre, ch(0), ch(1)], 5: [ch(2), ch(3)], 6: [ch(4), ch(5)], 7: [ch(6), ch(7)],
                8: [gate, tagcheck], 10: [publish]}
    elif sched == 2:
        plan = {0: [some(loads, 0, 4)], 1: [some(loads, 4, 8)], 2: [some(loads, 8, 12)], 3: [some(loads, 12, 16)],
                4: [some(loads, 16, 20)], 5: [some(loads, 20, 23), tagload], 6: [some(gloads, 0, 5)],
                7: [wait_pre, some(gloads, 5, 10), ch(0), ch(1)], 8: [ch(2), ch(3), ch(4)], 9: [ch(5), ch(6), ch(7)],
                10: [gate, tagcheck], 11: [publish]}
    elif sched == 3:
        plan = {-1: [some(loads, 0, 23), tagload], 2: [wait_pre, ch(0)], 3: [ch(1)], 4: [ch(2), some(gloads, 0, 5)],
                5: [ch(3), some(gloads, 5, 10)], 6: [ch(4)], 7: [ch(5)], 8: [ch(6)], 9: [ch(7)],
                10: [gate, tagcheck], 11: [publish]}
    elif sched == 4:
        plan = {1: [some(loads, 0, 11)], 2: [some(loads, 11, 23)], 3: [tagload],
                4: [wait_pre, ch(0)], 5: [ch(1)], 6: [ch(2), some(gloads, 0, 5)], 7: [ch(3), some(gloads, 5, 10)],
                8: [ch(4)], 9: [ch(5), tagcheck], 10: [ch(6)], 11: [ch(7)], 12: [gate]}
    elif sched == 5:
        plan = {1: [some(loads, 0, 11)], 2: [some(loads, 11, 23)], 3: [some(gloads, 0, 10), tagload],
                4: [wait_pre, ch(0)], 5: [ch(1)], 6: [ch(2), gate], 7: [ch(3)],
                8: [ch(4)], 9: [ch(5), tagcheck], 10: [ch(6)], 11: [ch(7)], 12: []}
    late_publish = sched in (4, 5)
    for b in range(-1, 13):
        if b >= 0:
            a("s_barrier")
        for f in plan.get(b, []):
            f()
    nh = h_loads(a)
    a("s_barrier")
    if late_publish:
        a(f"s_waitcnt vmcnt({nh})")
        flag_off(0, S_HP, S_MT, 80, a)
        a("s_lshl_b32 s81, s71, 2")
        signal(a, 80, ("81", ), 8)
    a(f"""
    v_mov_b32 v16, 0
    v_mov_b32 v17, 0
    v_mov_b32 v18, 0
    v_mov_b32 v19, 0
    v_mov_b32 v12, {L_FLG}
    v_mov_b32 v13, s{S_NONCE}
    ds_write_b128 v12, v[16:19]
    ds_write_b128 v12, v[16:19] offset:16
    ds_write_b128 v12, v[16:19] offset:32
    ds_write_b32 v12, v13 offset:{F_NONCE}
    v_lshlrev_b32 v8, 4, v{LANE}
    s_mul_i32 s82, s71, {2*U_CH}
    s_add_u32 s82, s82, {L_U}
    v_add_u32 v{LANE-2}, s82, v8
    v_and_b32 v9, 31, v{LANE}
    v_lshlrev_b32 v9, 4, v9
    v_add_u32 v9, s82, v9
    ds_write_b128 v9, v[16:19]
    ds_write_b128 v9, v[16:19] offset:{U_CH}
    v_lshrrev_b32 v9, 2, v{LANE}
    v_lshlrev_b32 v10, 8, v9
    v_and_b32 v12, 3, v{LANE}
    v_lshlrev_b32 v12, 2, v12
    v_add_u32 v10, v10, v12
    v_lshlrev_b32 v11, 12, v9
    v_add_u32 v11, v11, v12
    s_lshr_b32 s80, s2, 4
    s_lshl_b32 s80, s80, 12
    s_add_u32 s80, s80, {WS_FL:#x}
    s_lshl_b32 s81, s{S_MT3}, 8
    s_add_u32 s81, s81, {WS_FL:#x}
    s_waitcnt lgkmcnt(0)
    s_barrier
    buffer_load_dword v12, v10, {sr(R_WS)}, s80 offen sc1
    buffer_load_dword v13, v11, {sr(R_WS)}, s81 offen sc1
    s_barrier
    s_mov_b32 s72, 0x33333333
    s_mov_b32 s73, 0x33333333
    s_waitcnt vmcnt(0)
    v_cmp_eq_u32 vcc, s{S_NONCE}, v12
    v_cmp_eq_u32 s[74:75], s{S_NONCE}, v13
    s_nop 3
    s_and_b64 vcc, vcc, s[74:75]
    s_and_b64 vcc, vcc, s[72:73]
    s_cmp_eq_u64 vcc, s[72:73]
    s_cbranch_scc1 L_pp_ready
    """)
    poll_lines(a, 10, 80, 2, 12, 72)
    poll_lines(a, 11, 81, 2, 12, 72)
    a.label("L_pp_ready")
    u_loads(a)
    stamp(a, 2)


def gen_conv(a, cfg):
    a.label("L_conv")
    if cfg.get("prio", 0) & 1:
        a("s_setprio 0")
    ACC, AP = 0, 160
    AF, BF = [32, 96], [64, 128]
    VA, VB, VY = 164, 165, 166
    a(f"""
    s_sub_u32 s71, s{S_WAVE}, 4
    s_lshl_b32 s72, s2, 2
    s_add_u32 s72, s72, s71
    s_mul_i32 s73, s71, {H_CH}
    s_lshl_b32 s74, s72, 12
    v_lshlrev_b32 v1, 4, v{LANE}
    v_lshrrev_b32 v2, 4, v{LANE}
    v_and_b32 v3, 15, v{LANE}
    v_add_u32 v4, v2, v3
    v_subrev_u32 v4, 15, v4
    v_add_u32 v5, s73, v1
    v_mov_b32 v10, 0
    v_mul_u32_u24 v14, {COPY}, v2
    v_lshlrev_b32 v15, 1, v3
    v_add_u32 v14, v14, v15
    v_add_u32 v14, s73, v14
    v_and_b32 v6, 3, v3
    v_mul_u32_u24 v6, {COPY}, v6
    v_lshlrev_b32 v7, 4, v2
    v_add_u32 v6, v6, v7
    v_lshrrev_b32 v7, 2, v3
    v_lshlrev_b32 v7, 3, v7
    v_add_u32 v6, v6, v7
    v_add_u32 v{VA}, s73, v6
    v_lshlrev_b32 v6, 1, v3
    v_add_u32 v6, 1, v6
    v_sub_u32 v6, v6, v2
    v_lshlrev_b32 v6, 4, v6
    s_mul_i32 s75, s71, {U_CH}
    s_add_u32 s75, s75, {L_U + 64}
    v_add_u32 v{VB}, s75, v6
    v_lshlrev_b32 v6, 5, v3
    v_lshlrev_b32 v7, 3, v2
    v_add_u32 v{VY}, v6, v7
    v_mov_b32 v9, {L_FLG}
    ds_read_b32 v11, v9 offset:{F_NONCE}
    s_waitcnt vmcnt(0)
    """)
    a("s_cmp_lt_u32 s71, 2\ns_cbranch_scc1 L_conv_nou")
    for c in range(2):
        for j in range(4):
            a(f"ds_write_b128 v{LANE-2}, {vr(16+16*c+4*j)} offset:{c*U_CH + 512 + j*1024}")
    a(f"""
    v_mov_b32 v12, 1
    s_waitcnt lgkmcnt(0)
    s_mov_b64 exec, 1
    ds_add_u32 v9, v12 offset:{F_U}
    s_mov_b64 exec, -1
    """)
    a.label("L_conv_nou")
    TB = 76
    for j in range(4):
        d = [HD + 4 * j + m for m in range(4)] + [HE + 2 * j, HE + 2 * j + 1]
        for m in range(4):
            a(f"v_alignbit_b32 v{TB+m}, v{d[m+1]}, v{d[m]}, 16")
        for m in range(4):
            a(f"v_mov_b32 v{TB+4+m}, v{d[m+1]}")
        for m in range(4):
            a(f"v_alignbit_b32 v{TB+8+m}, v{d[m+2]}, v{d[m+1]}, 16")
        for m in range(2):
            a(f"v_mov_b32 v{TB+12+m}, v{d[m+2]}")
        for m in range(2):
            a(f"v_mov_b32 v{TB+14+m}, v{d[m+4]}")
        for c in range(4):
            a(f"ds_write_b128 v5, {vr(TB+4*c)} offset:{c*COPY + 32 + j*1024}")
        TB = 92 if TB == 76 else 76
    a(f"""
    v_cmp_gt_i32 vcc, 0, v4
    v_sub_u32 v16, 15, v3
    v_lshrrev_b32 v17, 3, v16
    v_cndmask_b32 v6, v{HFX}, v10, vcc
    v_and_b32 v18, 1, v16
    v_lshlrev_b32 v18, 4, v18
    v_lshlrev_b32 v8, v18, v{HDV}
    v_cmp_eq_u32 vcc, v17, v2
    ds_write_b16 v14, v6
    v_bfe_u32 v19, v16, 1, 2
    v_cndmask_b32 v8, v10, v8, vcc
    """)
    for m in range(4):
        a(f"v_cmp_eq_u32 vcc, {m}, v19")
        a("s_nop 1")
        a(f"v_cndmask_b32 v{AP+m}, v10, v8, vcc")
    a(f"s_waitcnt lgkmcnt(0)\nv_readfirstlane_b32 s{S_NONCE}, v11")
    lds_poll(a, 9, F_U, 2, 12, 76)
    stamp(a, 3)

    def rd(rho, s):
        r = []
        for i in range(8):
            r.append(f"ds_read_b128 {vr(BF[s]+4*i)}, v{VB} offset:{512*i + 64*(7-rho)}")
            n = 8 * i + rho
            r.append(f"ds_read_b64 {vr(AF[s]+4*i,2)}, v{VA} offset:{64*n}")
            r.append(f"ds_read_b64 {vr(AF[s]+4*i+2,2)}, v{VA} offset:{64*n+8}")
        return r

    def mm(rho, s):
        m = []
        for T in range(8):
            for i in range(T + 1):
                c = "0" if (rho == 0 and i == 0) else vr(ACC + 4 * T)
                m.append(mfma(ACC + 4 * T, AF[s] + 4 * i, BF[s] + 4 * (T - i), c))
            if rho == 0:
                m.append(mfma(ACC + 4 * T, AP, BF[s] + 4 * T, vr(ACC + 4 * T)))
        return m

    for x in rd(0, 0):
        a(x)
    for rho in range(8):
        s = rho & 1
        a("s_waitcnt lgkmcnt(0)")
        nxt = rd(rho + 1, s ^ 1) if rho < 7 else []
        k = 0
        for x in mm(rho, s):
            a(x)
            if k < len(nxt):
                a(nxt[k]); k += 1
        assert k == len(nxt)
    a("s_nop 7")
    stamp(a, 4)
    a(f"s_add_u32 s75, s74, {WS_YT:#x}")
    for T in range(8):
        a(f"v_cvt_pk_bf16_f32 v{32+2*T}, v{ACC+4*T}, v{ACC+4*T+1}")
        a(f"v_cvt_pk_bf16_f32 v{33+2*T}, v{ACC+4*T+2}, v{ACC+4*T+3}")
    for T in range(8):
        a(f"buffer_store_dwordx2 {vr(32+2*T,2)}, v{VY}, {sr(R_WS)}, s75 offen offset:{512*T} sc1")
    a(f"""
    v_mov_b32 v2, {L_FLG}
    v_mov_b32 v3, 1
    s_mov_b64 exec, 1
    ds_add_u32 v2, v3 offset:{F_CONV}
    s_mov_b64 exec, -1
    s_waitcnt vmcnt(0)
    s_lshr_b32 s76, s2, 4
    s_and_b32 s77, s2, 15
    """)
    flag_off(3, 76, 77, 78, a)
    a("s_lshl_b32 s79, s71, 2")
    signal(a, 78, ("79", ), 4)
    lds_poll(a, 2, F_CONV, 4, 4, 76)
    stamp(a, 5)
    a("s_cmp_ge_u32 s71, 2\ns_cbranch_scc1 L_yload")

    if cfg.get("wogate", 1):
        lds_poll(a, 2, F_RED, 4, 4, 76)
    NG = 8
    vm = VM(a)
    vm.issue("other", 1)
    srd(a, R_A, P_WO, 2 << 20)
    a(f"""
    v_lshrrev_b32 v4, 3, v{LANE}
    v_and_b32 v5, 7, v{LANE}
    v_bfe_u32 v6, v{LANE}, 4, 2
    v_lshlrev_b32 v6, 1, v6
    v_xor_b32 v5, v5, v6
    v_lshlrev_b32 v5, 4, v5
    v_lshlrev_b32 v4, 11, v4
    v_add_u32 v1, v4, v5
    s_lshl_b32 s72, s{S_NT3}, 7
    s_lshl_b32 s73, s71, 15
    s_add_u32 s72, s72, s73
    s_lshl_b32 s73, s71, 11
    """)
    for g in range(NG):
        for h in HEAD_ORDER[4 * g:4 * g + 4]:
            for i in range(2):
                p0 = 4 * h + i
                a(f"s_add_u32 m0, s73, {p0*1024}")
                a(f"s_add_u32 s74, s72, {p0*16384}")
                a(f"buffer_load_dwordx4 v1, {sr(R_A)}, s74 offen lds")
                vm.issue(("w", g))
    stamp(a, 6)
    a("s_waitcnt vmcnt(0)\ns_barrier")
    stamp(a, 7)
    a("s_barrier")
    stamp_flush(a)
    a("s_endpgm")

    a.label("L_yload")
    a("s_barrier")
    a(f"""
    v_lshrrev_b32 v8, 2, v{LANE}
    v_lshlrev_b32 v8, 8, v8
    v_and_b32 v9, 3, v{LANE}
    v_lshlrev_b32 v9, 2, v9
    v_add_u32 v8, v8, v9
    s_lshl_b32 s80, s{S_NT3}, 12
    s_add_u32 s80, s80, {WS_FL + 3*65536:#x}
    """)
    poll_lines(a, 8, 80, 4, 10, 72)
    a(f"""
    s_sub_u32 s71, s71, 2
    v_lshrrev_b32 v4, 4, v{LANE}
    v_and_b32 v5, 15, v{LANE}
    v_lshlrev_b32 v6, 12, v4
    v_lshlrev_b32 v5, 4, v5
    v_add_u32 v6, v6, v5
    v_lshlrev_b32 v7, 8, v4
    v_add_u32 v7, v7, v5
    s_lshl_b32 s72, s{S_NT3}, 18
    s_lshl_b32 s73, s{S_MT3}, 8
    s_add_u32 s72, s72, s73
    s_lshl_b32 s73, s71, 17
    s_add_u32 s72, s72, s73
    s_add_u32 s72, s72, {WS_YT:#x}
    s_lshl_b32 s73, s71, 13
    s_add_u32 s73, s73, {L_Y}
    v_add_u32 v7, s73, v7
    """)
    for i in range(8):
        a(f"s_add_u32 s74, s72, {i*16384}")
        a(f"buffer_load_dwordx4 {vr(16+4*i)}, v6, {sr(R_WS)}, s74 offen sc1")
    a("s_waitcnt vmcnt(0)")
    for i in range(8):
        a(f"ds_write_b128 v7, {vr(16+4*i)} offset:{i*1024}")
    a("s_waitcnt lgkmcnt(0)")
    stamp(a, 6)
    a("s_barrier")
    stamp(a, 7)
    stamp_flush(a)
    a("s_endpgm")


def gen_compute(a, cfg):
    a.label("L_compute")
    Q = lambda dt, rt: 0 + 4 * (4 * dt + rt)
    K = lambda rt, dt: 32 + 4 * (2 * rt + dt)
    V = lambda rt, et: 64 + 4 * (2 * rt + et)
    FS = [96, 136]
    AB, AC = 176, 180
    BAR_AT = cfg.get("barat", 5)
    W1 = {0: [0, 8, 16], 1: [0], 2: [0, 8], 3: None}[cfg.get("w1", 0)]
    a(f"""
    s_and_b32 s71, s{S_WAVE}, 1
    s_lshr_b32 s72, s{S_WAVE}, 1
    v_and_b32 v1, 15, v{LANE}
    v_lshrrev_b32 v2, 4, v{LANE}
    v_lshrrev_b32 v3, 1, v1
    v_xor_b32 v3, v3, v2
    v_lshlrev_b32 v3, 4, v3
    s_lshl_b32 s73, s72, 13
    v_lshlrev_b32 v4, 7, v1
    v_add_u32 v4, s73, v4
    v_add_u32 v{AB}, v4, v3
    v_xor_b32 v{AB+1}, 64, v{AB}
    v_bfe_u32 v3, v{LANE}, 2, 2
    v_lshlrev_b32 v4, 3, v2
    v_add_u32 v4, v4, v3
    v_lshlrev_b32 v4, 7, v4
    v_lshrrev_b32 v3, 1, v3
    v_and_b32 v5, 1, v2
    v_lshlrev_b32 v5, 1, v5
    v_or_b32 v3, v3, v5
    v_lshlrev_b32 v3, 1, v3
    v_bfe_u32 v5, v{LANE}, 1, 1
    s_lshl_b32 s73, s71, 2
    v_or_b32 v5, s73, v5
    v_xor_b32 v3, v3, v5
    v_lshlrev_b32 v3, 4, v3
    v_add_u32 v4, v4, v3
    v_and_b32 v3, 1, v{LANE}
    v_lshlrev_b32 v3, 3, v3
    v_add_u32 v4, v4, v3
    v_add_u32 v{AB+2}, 16384, v4
    v_xor_b32 v{AB+3}, 32, v{AB+2}
    s_mov_b32 s74, {(NS-1)*SLOT}
    """)
    if cfg.get("cpf", 1):
        a(f"""
        s_getpc_b64 s[4:5]
        L_pc:
        s_sub_u32 s4, s4, L_pc-{KNAME}
        s_subb_u32 s5, s5, 0
        s_lshl_b32 s6, s{S_WAVE}, 13
        v_lshlrev_b32 v6, 6, v{LANE}
        v_add_u32 v6, s6, v6
        v_min_u32 v7, L_end-{KNAME}, v6
        global_load_dword v240, v7, s[4:5]
        v_add_u32 v6, 4096, v6
        v_min_u32 v7, L_end-{KNAME}, v6
        global_load_dword v241, v7, s[4:5]
        """)
    for i in range(4):
        a(f"v_add_u32 v{AC+i}, s74, v{AB+i}")
    for r in range(96):
        a(f"v_mov_b32 v{r}, 0")

    def reads(kk, fs):
        X = lambda rt: fs + 4 * rt
        W = lambda seg, ct: fs + 16 + 8 * seg + 4 * ct
        r = []
        for seg in range(3):
            for ct in range(2):
                for t in range(2):
                    r.append((f"ds_read_b64_tr_b16 {vr(W(seg,ct)+2*t,2)}, v{AC+2+ct} offset:{seg*8192+kk*4096+t*512}", ("w", seg, ct, t)))
            if seg == 0:
                for rt in range(4):
                    r.append((f"ds_read_b128 {vr(X(rt))}, v{AC+kk} offset:{rt*2048}", ("x", rt)))
        return r

    def mfmas(fs):
        X = lambda rt: fs + 4 * rt
        W = lambda seg, ct: fs + 16 + 8 * seg + 4 * ct
        m = []
        for rt in range(4):
            for dt in range(2):
                m.append((mfma(Q(dt, rt), W(0, dt), X(rt), vr(Q(dt, rt))), [("x", rt), ("w", 0, dt, 1)]))
        for rt in range(4):
            for dt in range(2):
                m.append((mfma(K(rt, dt), X(rt), W(1, dt), vr(K(rt, dt))), [("x", rt), ("w", 1, dt, 1)]))
        for rt in range(4):
            for et in range(2):
                m.append((mfma(V(rt, et), X(rt), W(2, et), vr(V(rt, et))), [("x", rt), ("w", 2, et, 1)]))
        return m

    if cfg.get("prio", 0) & 2:
        a("s_setprio 1")
    stamp(a, 1)
    a("s_barrier")
    stamp(a, 2)
    for r, _ in reads(0, FS[0]):
        a(r)
    a("s_mov_b32 s75, 0")
    a.label("L_gemm1")
    tags = [t for _, t in reads(0, FS[0])]
    exp = cfg.get("exp", 0)
    if exp & 1:
        _reads = reads
        reads = lambda kk, fs: []
        tags = []
        _m = mfmas
        mfmas = lambda fs: [(t, []) for t, _ in _m(fs)]
    if exp & 2:
        _m2 = mfmas
        mfmas = lambda fs: [("s_nop 0", n) for _, n in _m2(fs)]
    weave(a, mfmas(FS[0]), tags, reads(1, FS[1]), waits=W1)
    upd = f"s_add_u32 s74, s74, {SLOT}\ns_cmp_eq_u32 s74, {NS*SLOT}\ns_cselect_b32 s74, 0, s74"
    hooks = {1: upd, BAR_AT: "s_waitcnt lgkmcnt(0)\ns_cmp_eq_u32 s75, 15\ns_cbranch_scc1 L_g1_nobar\ns_barrier\nL_g1_nobar:\n" + "\n".join(f"v_add_u32 v{AC+i}, s74, v{AB+i}" for i in range(4))}
    weave(a, mfmas(FS[1]), tags, reads(0, FS[0]), start=BAR_AT + 1, hooks=hooks, waits=W1)
    a("s_add_u32 s75, s75, 1\ns_cmp_lt_u32 s75, 16\ns_cbranch_scc1 L_gemm1")
    stamp(a, 3)

    TMP = 96
    PK = lambda p, dt: 128 + 4 * (2 * p + dt)
    PV = lambda p, et: 144 + 4 * (2 * p + et)
    ONES = 160
    KV = lambda dt, et: 164 + 4 * (2 * dt + et)
    ZZ = lambda dt: 180 + 4 * dt
    VL = 224
    VF = 230
    S_L2E, S_EPS = 8, 10
    a(f"""
    s_mov_b32 s{S_L2E}, {LOG2E:#x}
    s_mov_b32 s{S_L2E+1}, {LOG2E:#x}
    s_mov_b32 s{S_EPS}, {EPS6:#x}
    s_mov_b32 s{S_EPS+1}, {EPS6:#x}
    s_mov_b32 s{S_EPS+2}, 1.0
    s_mov_b32 s{S_EPS+3}, 1.0
    v_lshlrev_b32 v{VL}, 4, v{LANE}
    v_mov_b32 v{VF}, {L_FLG}
    v_mov_b32 v{ONES}, 0x3f803f80
    v_mov_b32 v{ONES+1}, 0x3f803f80
    v_mov_b32 v{ONES+2}, 0x3f803f80
    v_mov_b32 v{ONES+3}, 0x3f803f80
    s_waitcnt lgkmcnt(0)
    ds_read_b32 v{VF+1}, v{VF} offset:{F_NONCE}
    s_nop 3
    """)
    phi(a, [K(rt, dt) + e for rt in range(4) for dt in range(2) for e in range(4)], TMP, S_L2E, S_EPS)
    for p in range(2):
        for dt in range(2):
            for hlf in range(2):
                src = K(2 * p + hlf, dt)
                a(f"v_cvt_pk_bf16_f32 v{PK(p,dt)+2*hlf}, v{src}, v{src+1}")
                a(f"v_cvt_pk_bf16_f32 v{PK(p,dt)+2*hlf+1}, v{src+2}, v{src+3}")
        for et in range(2):
            for hlf in range(2):
                src = V(2 * p + hlf, et)
                a(f"v_cvt_pk_bf16_f32 v{PV(p,et)+2*hlf}, v{src}, v{src+1}")
                a(f"v_cvt_pk_bf16_f32 v{PV(p,et)+2*hlf+1}, v{src+2}, v{src+3}")
    a(f"s_waitcnt lgkmcnt(0)\nv_readfirstlane_b32 s{S_NONCE}, v{VF+1}")
    for p in range(2):
        for dt in range(2):
            for et in range(2):
                a(mfma(KV(dt, et), PK(p, dt), PV(p, et), "0" if p == 0 else vr(KV(dt, et))))
            a(mfma(ZZ(dt), PK(p, dt), ONES, "0" if p == 0 else vr(ZZ(dt))))
    a(f"""
    s_lshl_b32 s78, s71, 12
    s_add_u32 s78, s78, {L_KVX}
    v_add_u32 v{VL+2}, s78, v{VL}
    v_lshrrev_b32 v{VL+3}, 4, v{LANE}
    v_lshlrev_b32 v{VL+3}, 4, v{VL+3}
    s_lshl_b32 s78, s71, 7
    s_add_u32 s78, s78, {L_ZX}
    v_add_u32 v{VL+4}, s78, v{VL+3}
    s_lshl_b32 s79, s71, 2
    v_add_u32 v{VL+5}, s79, v{VF}
    s_lshl_b32 s80, s{S_HP}, 1
    s_add_u32 s80, s80, s71
    s_cmp_eq_u32 s72, 0
    s_cbranch_scc1 L_kvlower
    """)
    for t in range(4):
        a(f"ds_write_b128 v{VL+2}, {vr(KV(t>>1,t&1))} offset:{t*1024}")
    for dt in range(2):
        a(f"ds_write_b128 v{VL+4}, {vr(ZZ(dt))} offset:{dt*64}")
    a(f"""
    v_mov_b32 v{TMP}, 1
    s_waitcnt lgkmcnt(0)
    ds_write_b32 v{VL+5}, v{TMP} offset:{F_KVX}
    s_branch L_kvdone
    """)
    a.label("L_kvlower")
    lds_poll(a, VL + 5, F_KVX, 1, TMP, 82)
    for t in range(4):
        a(f"ds_read_b128 {vr(TMP+4*t)}, v{VL+2} offset:{t*1024}")
    for dt in range(2):
        a(f"ds_read_b128 {vr(TMP+16+4*dt)}, v{VL+4} offset:{dt*64}")
    a(f"""
    s_lshl_b32 s81, s{S_MT}, 5
    s_add_u32 s81, s81, s80
    s_lshl_b32 s82, s81, 11
    s_add_u32 s82, s82, {WS_KVP:#x}
    s_lshl_b32 s83, s81, 7
    s_add_u32 s83, s83, {WS_ZP:#x}
    s_waitcnt lgkmcnt(0)
    """)
    for t in range(4):
        for e in range(4):
            a(f"v_add_f32 v{KV(t>>1,t&1)+e}, v{KV(t>>1,t&1)+e}, v{TMP+4*t+e}")
    for dt in range(2):
        for e in range(4):
            a(f"v_add_f32 v{ZZ(dt)+e}, v{ZZ(dt)+e}, v{TMP+16+4*dt+e}")
    for et in range(2):
        for dt in range(2):
            a(f"v_cvt_pk_bf16_f32 v{TMP+4*et+2*dt}, v{KV(dt,et)}, v{KV(dt,et)+1}")
            a(f"v_cvt_pk_bf16_f32 v{TMP+4*et+2*dt+1}, v{KV(dt,et)+2}, v{KV(dt,et)+3}")
        a(f"buffer_store_dwordx4 {vr(TMP+4*et)}, v{VL}, {sr(R_WS)}, s82 offen offset:{et*1024} sc1")
    a(f"""
    v_and_b32 v{TMP+24}, 15, v{LANE}
    v_cmp_eq_u32 vcc, 0, v{TMP+24}
    s_and_saveexec_b64 s[78:79], vcc
    """)
    for dt in range(2):
        a(f"buffer_store_dwordx4 {vr(ZZ(dt))}, v{VL+3}, {sr(R_WS)}, s83 offen offset:{dt*64} sc1")
    a("s_mov_b64 exec, s[78:79]")
    flag_off(1, S_HP, S_MT, 82, a)
    a("s_lshl_b32 s83, s71, 2")
    signal(a, 82, ("83", ), TMP, drain=True)
    a.label("L_kvdone")
    stamp(a, 4)

    PQ = lambda rt: 32 + 4 * rt
    phi(a, [Q(dt, rt) + e for dt in range(2) for rt in range(4) for e in range(4)], TMP, S_L2E, S_EPS)
    for rt in range(4):
        for dt in range(2):
            a(f"v_cvt_pk_bf16_f32 v{PQ(rt)+2*dt}, v{Q(dt,rt)}, v{Q(dt,rt)+1}")
            a(f"v_cvt_pk_bf16_f32 v{PQ(rt)+2*dt+1}, v{Q(dt,rt)+2}, v{Q(dt,rt)+3}")
    VP = 232
    a(f"""
    v_lshrrev_b32 v{VP}, 2, v{LANE}
    v_lshlrev_b32 v{VP}, 8, v{VP}
    v_and_b32 v{VP+1}, 3, v{LANE}
    v_lshlrev_b32 v{VP+1}, 2, v{VP+1}
    v_add_u32 v{VP}, v{VP}, v{VP+1}
    s_lshl_b32 s78, s{S_HQ}, 12
    s_add_u32 s78, s78, {WS_FL + 65536:#x}
    """)
    a(f"s_cmp_eq_u32 s{S_WAVE}, 2\ns_cbranch_scc0 L_s2_lds")
    poll_lines(a, VP, 78, 2, VP + 2, 80)
    a(f"v_mov_b32 v{VP+2}, 1\nds_write_b32 v{VF}, v{VP+2} offset:{F_S2}\ns_branch L_s2_done")
    a.label("L_s2_lds")
    lds_poll(a, VF, F_S2, 1, VP + 2, 80)
    a.label("L_s2_done")
    stamp(a, 5)
    PART = 96
    SUM = 160
    a(f"""
    s_lshl_b32 s78, s{S_HQ}, 1
    s_add_u32 s78, s78, s71
    s_lshl_b32 s79, s78, 11
    s_lshl_b32 s80, s72, 10
    s_add_u32 s79, s79, s80
    s_add_u32 s79, s79, {WS_KVP:#x}
    v_and_b32 v48, 15, v{LANE}
    v_lshlrev_b32 v48, 12, v48
    v_lshrrev_b32 v49, 4, v{LANE}
    v_lshlrev_b32 v49, 4, v49
    v_add_u32 v48, v48, v49
    s_lshl_b32 s80, s78, 7
    s_add_u32 s80, s80, {WS_ZP:#x}
    buffer_load_dwordx4 v[52:55], v48, {sr(R_WS)}, s80 offen sc1
    buffer_load_dwordx4 v[56:59], v48, {sr(R_WS)}, s80 offen offset:64 sc1
    """)
    for p in range(16):
        a(f"s_add_u32 s81, s{S_MT}, {p}\ns_and_b32 s81, s81, 15\ns_lshl_b32 s81, s81, 16\ns_add_u32 s81, s81, s79")
        a(f"buffer_load_dwordx4 {vr(PART+4*p)}, v{VL}, {sr(R_WS)}, s81 offen sc1")
    for e in range(8):
        a(f"v_mov_b32 v{SUM+e}, 0")
    a("s_mov_b32 s82, 0x3f80\ns_mov_b32 s83, 0x3f800000")
    a("s_waitcnt vmcnt(16)")
    for ctl in ("row_ror:8", "row_ror:4", "row_ror:2", "row_ror:1"):
        for e in range(8):
            a(f"v_add_f32_dpp v{52+e}, v{52+e}, v{52+e} {ctl} row_mask:0xf bank_mask:0xf")
    ZF = 60
    for i in range(4):
        a(f"v_cvt_pk_bf16_f32 v{ZF+i}, v{52+2*i}, v{52+2*i+1}")
    for p in range(16):
        if p % 2 == 0:
            a(f"s_waitcnt vmcnt({14-p})")
        for i in range(4):
            a(f"v_dot2_f32_bf16 v{SUM+2*i}, v{PART+4*p+i}, s82, v{SUM+2*i}")
            a(f"v_dot2_f32_bf16 v{SUM+2*i+1}, v{PART+4*p+i}, s83, v{SUM+2*i+1}")
    stamp(a, 11)
    a("s_nop 2")
    KF = [64, 68]
    for i in range(4):
        a(f"v_cvt_pk_bf16_f32 v{64+i}, v{SUM+2*i}, v{SUM+2*i+1}")
    a(f"""
    s_lshl_b32 s78, s71, 11
    s_lshl_b32 s79, s72, 10
    s_add_u32 s78, s78, {L_OX}
    s_add_u32 s80, s78, s79
    s_xor_b32 s79, s79, 1024
    s_add_u32 s81, s78, s79
    v_add_u32 v50, s80, v{VL}
    v_add_u32 v51, s81, v{VL}
    ds_write_b128 v50, v[64:67]
    s_lshl_b32 s78, s{S_WAVE}, 2
    s_xor_b32 s79, s78, 8
    v_add_u32 v48, s78, v{VF}
    v_add_u32 v49, s79, v{VF}
    v_mov_b32 v72, 1
    s_waitcnt lgkmcnt(0)
    ds_write_b32 v48, v72 offset:{F_OX}
    """)
    lds_poll(a, 49, F_OX, 1, 72, 82)
    a("ds_read_b128 v[68:71], v51\ns_waitcnt lgkmcnt(0)")
    stamp(a, 12)
    a(f"""
    s_cmp_eq_u32 s72, 0
    s_cbranch_scc1 L_noswap
    v_swap_b32 v64, v68
    v_swap_b32 v65, v69
    v_swap_b32 v66, v70
    v_swap_b32 v67, v71
    """)
    a.label("L_noswap")
    NUM = lambda et, rt: 96 + 4 * (4 * et + rt)
    DEN = lambda rt: 128 + 4 * rt
    a("s_nop 1")
    for rt in range(4):
        for et in range(2):
            a(mfma(NUM(et, rt), KF[et], PQ(rt), "0"))
        a(mfma(DEN(rt), ZF, PQ(rt), "0"))
    a(f"""
    s_lshl_b32 s78, s{S_MT}, 3
    s_lshl_b32 s79, s72, 2
    s_add_u32 s78, s78, s79
    s_lshl_b32 s78, s78, 5
    s_lshl_b32 s79, s{S_HQ}, 1
    s_add_u32 s78, s78, s79
    s_add_u32 s78, s78, s71
    s_lshl_b32 s78, s78, 10
    s_add_u32 s78, s78, {WS_O:#x}
    s_nop 1
    """)
    for rt in range(4):
        a(f"v_add_f32 v{DEN(rt)}, s{S_EPS}, v{DEN(rt)}")
    for rt in range(4):
        a(f"v_rcp_f32 v{DEN(rt)}, v{DEN(rt)}")
    OF = lambda rt: 144 + 4 * rt
    for rt in range(4):
        for et in range(2):
            for e in range(4):
                a(f"v_mul_f32 v{NUM(et,rt)+e}, v{NUM(et,rt)+e}, v{DEN(rt)}")
        for et in range(2):
            a(f"v_cvt_pk_bf16_f32 v{OF(rt)+2*et}, v{NUM(et,rt)}, v{NUM(et,rt)+1}")
            a(f"v_cvt_pk_bf16_f32 v{OF(rt)+2*et+1}, v{NUM(et,rt)+2}, v{NUM(et,rt)+3}")
        a(f"s_add_u32 s79, s78, {rt*32768}")
        a(f"buffer_store_dwordx4 {vr(OF(rt))}, v{VL}, {sr(R_WS)}, s79 offen sc1")
    a(f"v_mov_b32 v72, 1\ns_mov_b64 exec, 1\nds_add_u32 v{VF}, v72 offset:{F_RED}\ns_mov_b64 exec, -1")
    stamp(a, 13)
    flag_off(2, S_MT, S_HQ, 82, a)
    a(f"s_lshl_b32 s83, s{S_WAVE}, 2")
    signal(a, 82, ("83", ), TMP, drain=True)
    stamp(a, 6)

    vm = VM(a)
    srd(a, R_A, P_X, 4 << 20)
    srd(a, R_B, P_OUT, 4 << 20)
    ACC = lambda nt, st: 4 * (2 * nt + st)
    OR = 32
    PD = cfg.get("pd", 8)
    WF = [96, 112]
    XR = 128
    GR = 144
    WA = 148
    VX = 192
    XG = 160
    a(f"""
    v_and_b32 v1, 15, v{LANE}
    v_lshrrev_b32 v2, 4, v{LANE}
    s_lshl_b32 s73, s{S_MT3}, 7
    s_lshl_b32 s74, s{S_WAVE}, 5
    s_add_u32 s73, s73, s74
    v_add_u32 v3, s73, v1
    v_lshlrev_b32 v4, 11, v3
    v_lshlrev_b32 v5, 4, v2
    v_add_u32 v4, v4, v5
    s_lshl_b32 s74, s{S_NT3}, 7
    v_add_u32 v{VX}, s74, v4
    v_add_u32 v{VX+1}, 0x8000, v{VX}
    v_lshlrev_b32 v3, 2, v3
    s_mov_b32 s75, {WS_G:#x}
    """)
    for st in range(2):
        for ntp in range(2):
            a(f"buffer_load_dwordx4 {vr(XR+8*st+4*ntp)}, v{VX+st}, {sr(R_A)}, 0 offen offset:{64*ntp}")
    a(f"buffer_load_dword v{GR}, v3, {sr(R_WS)}, s75 offen sc1")
    a(f"buffer_load_dword v{GR+1}, v3, {sr(R_WS)}, s75 offen offset:64 sc1")
    a(f"""
    v_bfe_u32 v3, v{LANE}, 2, 2
    v_lshlrev_b32 v4, 2, v2
    v_add_u32 v4, v4, v3
    v_lshlrev_b32 v5, 7, v4
    v_lshrrev_b32 v4, 1, v4
    v_and_b32 v4, 3, v4
    v_lshlrev_b32 v4, 1, v4
    v_bfe_u32 v6, v{LANE}, 1, 1
    v_and_b32 v7, 1, v{LANE}
    v_lshlrev_b32 v7, 3, v7
    v_add_u32 v5, v5, v7
    """)
    for nt in range(4):
        a(f"v_or_b32 v7, {2*nt}, v6")
        a("v_xor_b32 v7, v7, v4")
        a("v_lshlrev_b32 v7, 4, v7")
        a(f"v_add_u32 v{WA+nt}, v5, v7")
    SP = list(range(4, 16)) + [56, 57, 58, 59]
    a(f"s_and_b32 s76, s{S_NT3}, 7\ns_mul_i32 s76, s76, 3\ns_lshr_b32 s76, s76, 1")
    for j in range(12):
        a(f"""
        s_add_u32 s77, s76, {j}
        s_cmp_ge_u32 s77, 12
        s_cselect_b32 s79, 12, 0
        s_sub_u32 s77, s77, s79
        s_mul_i32 s79, s77, 11
        s_lshr_b32 s79, s79, 5
        s_add_u32 s77, s77, s79
        s_lshl_b32 s{SP[j]}, s77, 11
        """)
    for j in range(4):
        a(f"""
        s_add_u32 s77, s{S_NT3}, {j}
        s_and_b32 s77, s77, 3
        s_lshl_b32 s77, s77, 13
        s_add_u32 s{SP[12+j]}, s77, {3*2048}
        """)
    a(f"""
    s_lshl_b32 s78, s{S_MT3}, 12
    s_add_u32 s78, s78, {WS_FL + 2*65536:#x}
    """)
    a("s_barrier")
    stamp(a, 8)
    poll_lines(a, VP, 78, 4, VP + 2, 80, prods=FAST_PAIRS)
    stamp(a, 7)
    a(f"""
    s_lshl_b32 s73, s{S_MT3}, 3
    s_lshl_b32 s74, s{S_WAVE}, 1
    s_add_u32 s73, s73, s74
    s_lshl_b32 s73, s73, 15
    s_add_u32 s73, s73, {WS_O:#x}
    s_add_u32 s74, s73, 32768
    """)

    WC = [WA + 4, WA + 4 + 4]

    VO = 194
    a(f"v_add_u32 v{VO+1}, 32768, v{VL}\nv_mov_b32 v{VO}, v{VL}")
    SO = [60, 61]

    def oload(i):
        j = i >> 1
        if (i & 1) == 0:
            a(f"s_add_u32 s{SO[j & 1]}, s73, s{SP[j]}")
        for st in range(2):
            a(f"buffer_load_dwordx4 {vr(OR+8*(i%PD)+4*st)}, v{VO+st}, {sr(R_WS)}, s{SO[j & 1]} offen offset:{(i&1)*1024} {'' if cfg.get('oplain', 0) else 'sc1'}")
            vm.issue(("o", i))

    def waddr(j):
        r = [f"s_lshl_b32 s76, s{SP[j]}, 2"]
        for nt in range(4):
            r.append(f"v_add_u32 v{WC[j & 1]+nt}, s76, v{WA+nt}")
        return r

    def wreads(i, s):
        base = WC[(i >> 1) & 1]
        r = []
        for nt in range(4):
            for t in range(2):
                r.append(f"ds_read_b64_tr_b16 {vr(WF[s]+4*nt+2*t,2)}, v{base+nt} offset:{(i&1)*4096+t*2048}")
        return r

    NFAST = 2 * len(FAST_PAIRS)
    P2 = VP + 3
    for i in range(PD):
        oload(i)
    for x in waddr(0) + waddr(1) + wreads(0, 0):
        a(x)
    for st in range(2):
        for ntp in range(2):
            b = XR + 8 * st + 4 * ntp
            a(f"v_permlane16_swap_b32 v{b}, v{b+2}")
            a(f"v_permlane16_swap_b32 v{b+1}, v{b+3}")
    a("s_nop 0")
    for st in range(2):
        for ntp in range(2):
            b = XR + 8 * st + 4 * ntp
            a(f"v_permlane32_swap_b32 v{b}, v{b+2}")
            a(f"v_permlane32_swap_b32 v{b+1}, v{b+3}")
    for st in range(2):
        a(f"v_sub_f32 v{GR+2+st}, 1.0, v{GR+st}")
    for st in range(2):
        for nt in range(4):
            ntp, odd = nt >> 1, nt & 1
            xr = XR + 8 * st + 4 * ntp + 2 * odd
            d = XG + 4 * (4 * st + nt)
            unpack(a, d, xr, 0); unpack(a, d + 1, xr, 1); unpack(a, d + 2, xr + 1, 0); unpack(a, d + 3, xr + 1, 1)
            for e in range(4):
                a(f"v_mul_f32 v{d+e}, v{d+e}, v{GR+2+st}")
    smask = sum(0xf << (4 * p) for p in SLOW_PAIRS)
    for i in range(32):
        s = i & 1
        if i == NFAST - PD - 6:
            a(f"buffer_load_dword v{P2}, v{VP}, {sr(R_WS)}, s78 offen sc1")
            vm.issue("p2")
        if i == NFAST - PD:
            vm.wait("p2")
            a(f"s_mov_b32 s80, {smask & 0xffffffff:#x}\ns_mov_b32 s81, {smask >> 32:#x}")
            a(f"v_cmp_eq_u32 vcc, s{S_NONCE}, v{P2}\ns_nop 3\ns_and_b64 vcc, vcc, s[80:81]\ns_cmp_eq_u64 vcc, s[80:81]\ns_cbranch_scc1 L_late_ok")
            poll_lines(a, VP, 78, 4, P2, 80, prods=SLOW_PAIRS)
            a.label("L_late_ok")
        vm.wait(("o", i))
        nxt = [(x, None) for x in wreads(i + 1, s ^ 1)] if i < 31 else []
        tags = [(nt, t) for nt in range(4) for t in range(2)]
        mf = []
        for nt in range(4):
            for st in range(2):
                c = "0" if i == 0 else vr(ACC(nt, st))
                mf.append((mfma(ACC(nt, st), WF[s] + 4 * nt, OR + 8 * (i % PD) + 4 * st, c), [(nt, 1)]))
        if cfg.get("cnomfma", 0):
            mf = [("s_nop 0", n) for _, n in mf]
        weave(a, mf, tags, nxt, waits={0: [0, 4], 1: [0, 2, 4, 6], 2: [0]}[cfg.get('cw', 0)])
        if (i & 1) == 1 and (i >> 1) + 2 < 16:
            for x in waddr((i >> 1) + 2):
                a(x)
        if i + PD < 32:
            oload(i + PD)
    stamp(a, 9)
    YR = 32
    a(f"""
    s_barrier
    v_bfe_u32 v64, v{LANE}, 2, 2
    v_lshrrev_b32 v65, 4, v{LANE}
    v_lshlrev_b32 v65, 2, v65
    v_add_u32 v64, v64, v65
    v_lshlrev_b32 v64, 8, v64
    v_and_b32 v65, 3, v{LANE}
    v_lshlrev_b32 v65, 3, v65
    v_add_u32 v64, v64, v65
    s_lshl_b32 s73, s{S_WAVE}, 6
    s_add_u32 s73, s73, {L_Y}
    v_add_u32 v64, s73, v64
    """)
    for nt in range(4):
        for st in range(2):
            a(f"ds_read_b64_tr_b16 {vr(YR+4*nt+2*st,2)}, v64 offset:{nt*4096+st*32}")
    a("s_waitcnt lgkmcnt(0)")
    T = 66
    OUT = 80
    for st in range(2):
        for nt in range(4):
            ntp, odd = nt >> 1, nt & 1
            yr = YR + 4 * nt + 2 * st
            ac = ACC(nt, st)
            xg = XG + 4 * (4 * st + nt)
            unpack(a, T, yr, 0); unpack(a, T + 1, yr, 1); unpack(a, T + 2, yr + 1, 0); unpack(a, T + 3, yr + 1, 1)
            for e in range(4):
                a(f"v_mul_f32 v{T+e}, v{T+e}, v{xg+e}")
            for e in range(4):
                a(f"v_fmac_f32 v{T+e}, v{ac+e}, v{GR+st}")
            o = OUT + 8 * st + 4 * ntp + 2 * odd
            a(f"v_cvt_pk_bf16_f32 v{o}, v{T}, v{T+1}")
            a(f"v_cvt_pk_bf16_f32 v{o+1}, v{T+2}, v{T+3}")
            T = 72 if T == 66 else 66
    a("s_nop 1")
    for st in range(2):
        for ntp in range(2):
            b = OUT + 8 * st + 4 * ntp
            a(f"v_permlane32_swap_b32 v{b}, v{b+2}")
            a(f"v_permlane32_swap_b32 v{b+1}, v{b+3}")
    a("s_nop 0")
    for st in range(2):
        for ntp in range(2):
            b = OUT + 8 * st + 4 * ntp
            a(f"v_permlane16_swap_b32 v{b}, v{b+2}")
            a(f"v_permlane16_swap_b32 v{b+1}, v{b+3}")
    for st in range(2):
        for ntp in range(2):
            a(f"buffer_store_dwordx4 {vr(OUT+8*st+4*ntp)}, v{VX+st}, {sr(R_B)}, 0 offen offset:{64*ntp} {['', 'sc1', 'nt', 'sc0 sc1', 'sc1 nt'][cfg.get('outfl', 1)]}")
    stamp(a, 10)
    stamp_flush(a)
    a.label("L_end")
    a("s_endpgm")


HEADER = f"""; gated_mix: g * linear_attention(x) + (1 - g) * x * h3_conv(k, v) in one persistent launch.
; @launch grid=(256,1,1) block=(512,1,1) lds={LDS_BYTES}
.amdgcn_target "amdgcn-amd-amdhsa--gfx950"
.text
.globl {KNAME}
.p2align 8
.type {KNAME},@function
{KNAME}:
"""

DESC = f""".section .rodata,"a"
.p2align 6
.amdhsa_kernel {KNAME}
  .amdhsa_next_free_vgpr 256
  .amdhsa_next_free_sgpr 102
  .amdhsa_accum_offset 256
  .amdhsa_group_segment_fixed_size 0
  .amdhsa_kernarg_size 104
  .amdhsa_user_sgpr_count 2
  .amdhsa_user_sgpr_kernarg_segment_ptr 1
  .amdhsa_system_sgpr_workgroup_id_x 1
  .amdhsa_float_denorm_mode_32 3
.end_amdhsa_kernel
"""


def generate(cfg=None):
    global STAMPS
    cfg = cfg or {}
    STAMPS = cfg.get("stamps", 0)
    a = Asm()
    BARTL[0] = cfg.get("bartl", 0)
    CUR_ROLE[0] = "pro"
    gen_prologue(a, cfg)
    CUR_ROLE[0] = "ld"
    gen_loader(a, cfg)
    CUR_ROLE[0] = "pp"
    gen_prepass(a, cfg)
    CUR_ROLE[0] = "ld" if BARTL[0] else "conv"
    gen_conv(a, cfg)
    CUR_ROLE[0] = "comp"
    gen_compute(a, cfg)
    return HEADER + a.text() + DESC


if __name__ == "__main__":
    cfg = {}
    out = f"cdna_kernels/{NAME}.s"
    for arg in sys.argv[1:]:
        if arg.startswith("-o"):
            out = arg[2:]
        else:
            k, v = arg.split("=")
            cfg[k] = int(v)
    open(out, "w").write(generate(cfg))
    print("wrote", out)
```

```python
import sys

NAME = "gated_mix__linear_attn_block__ssm_conv_h3__prompt"
KNAME = NAME + "_kernel"

WS_O = 0
WS_UT = 4 << 20
WS_YT = 8 << 20
WS_KVP = 12 << 20
WS_ZP = 14 << 20
WS_G = (14 << 20) + (1 << 19)
WS_FL = 15 << 20
WS_SIZE = 32 << 20
WS_TS = 24 << 20

SLOT = 40960
NS = 4
L_WE = 66560
L_U = 132096
U_CH = 4608
COPY = 4160
H_CH = 4 * COPY
L_Y = 132096
L_X = 150528
L_KVX = L_X
L_ZX = L_X + 8192
L_OX = L_X + 8448
L_FLG = L_X + 12544
LDS_BYTES = 163840
F_KVX, F_OX, F_CONV, F_U, F_RED, F_S2, F_G1, F_WE, F_W2, F_Y, F_NONCE = 0, 8, 24, 28, 32, 36, 40, 44, 48, 52, 60

LOG2E = 0x3FB8AA3B
EPS6 = 0x358637BD
SPIN_MAX = 200000

P_X, P_WQKV, P_WO, P_K, P_V, P_SK, P_H = 16, 18, 20, 24, 26, 28, 30
P_D, P_GW, P_OUT, P_DBG, P_WS = 32, 34, 36, 38, 40
R_WS = 44
R_A, R_B, R_C, R_D = 48, 52, 56, 60
S_WAVE, S_MT, S_HP, S_ROT, S_NONCE = 64, 65, 66, 67, 68
S_MT3, S_NT3 = 69, 70
S_URDY = 42
S_GROW = 42
S_HQ = 43
LANE = 250

STAMPS = 0
CUR_ROLE = ['']
BARTL = [0]


class Asm:
    def __init__(self):
        self.lines = []
        self.nlab = 0

    def __call__(self, s):
        for ln in s.split("\n"):
            ln = ln.strip()
            if ln:
                self.lines.append(ln if ln.endswith(":") else "  " + ln)

    def label(self, s):
        self.lines.append(s + ":")

    def raw(self, s):
        self.lines.append(s)

    def newlab(self, p):
        self.nlab += 1
        return f"{p}_{self.nlab}"

    def text(self):
        return "\n".join(self.lines) + "\n"


class VM:
    def __init__(self, a):
        self.a = a
        self.q = []

    def issue(self, tag, n=1):
        self.q += [tag] * n

    def wait(self, tag):
        if tag not in self.q:
            return
        idx = max(i for i, t in enumerate(self.q) if t == tag)
        n = len(self.q) - 1 - idx
        self.a(f"s_waitcnt vmcnt({min(n, 63)})")
        self.q = self.q[idx + 1:]

    def drain(self):
        self.a("s_waitcnt vmcnt(0)")
        self.q = []


def vr(b, n=4):
    return f"v[{b}:{b+n-1}]"


def sr(b, n=4):
    return f"s[{b}:{b+n-1}]"


def srd(a, dst, src, size):
    a(f"s_mov_b32 s{dst}, s{src}")
    a(f"s_and_b32 s{dst+1}, s{src+1}, 0xffff")
    a(f"s_mov_b32 s{dst+2}, {size:#x}")
    a(f"s_mov_b32 s{dst+3}, 0x20000")


NOSTAMP = set()


def stamp(a, idx):
    if STAMPS and (idx, CUR_ROLE[0]) not in NOSTAMP and not (CUR_ROLE[0] == "ld" and BARTL[0] and idx > 0):
        a("s_memtime s[100:101]" if STAMPS == 2 else "s_memrealtime s[100:101]")
        a("s_waitcnt lgkmcnt(0)")
        a(f"s_mov_b32 s{84+idx}, s100")


def stamp_flush_dbg(a):
    srd(a, R_D, P_DBG, 256)
    a(f"""
    s_cmp_eq_u32 s{S_WAVE}, 0
    s_cbranch_scc0 L_dbg_skip
    s_mov_b64 exec, 1
    v_mov_b32 v231, 4
    v_mov_b32 v232, s94
    buffer_atomic_umax v232, v231, {sr(R_D)}, 0 offen
    v_mov_b32 v231, 8
    s_not_b32 s98, s84
    v_mov_b32 v233, s98
    buffer_atomic_umax v233, v231, {sr(R_D)}, 0 offen
    s_cmp_eq_u32 s2, 37
    s_cbranch_scc0 L_dbg_skip
    """)
    for i in range(11):
        a(f"s_sub_u32 s98, s{84+i}, s84\nv_mov_b32 v232, s98\nv_mov_b32 v231, {16+4*i}\nbuffer_store_dword v232, v231, {sr(R_D)}, 0 offen")
    a.label("L_dbg_skip")


def stamp_flush(a):
    if STAMPS == 3:
        if CUR_ROLE[0] == "comp":
            stamp_flush_dbg(a)
        return
    if STAMPS:
        a("s_mov_b64 exec, 1")
        a(f"s_lshl_b32 s98, s2, 3\ns_add_u32 s98, s98, s{S_WAVE}\ns_lshl_b32 s98, s98, 6\ns_add_u32 s98, s98, {WS_TS:#x}")
        for i in range(14):
            a(f"v_mov_b32 v{232+i}, s{84+i}")
        a("v_mov_b32 v231, 0")
        for j in range(4):
            a(f"buffer_store_dwordx4 {vr(232+4*j)}, v231, {sr(R_WS)}, s98 offen offset:{16*j}")


FAST_PAIRS = [p for p in range(16) if p & 3 != 3]
SLOW_PAIRS = [p for p in range(16) if p & 3 == 3]
HEAD_ORDER = [2 * p + i for p in FAST_PAIRS + SLOW_PAIRS for i in range(2)]


def probe(a, cfg, where):
    if cfg.get("probe", 0) == where:
        for _ in range(4):
            a("s_sleep 16")


def mfma(d, x, y, c):
    return f"v_mfma_f32_16x16x32_bf16 {vr(d)}, {vr(x)}, {vr(y)}, {c}"


def unpack(a, dst, src, half):
    if half == 0:
        a(f"v_lshlrev_b32 v{dst}, 16, v{src}")
    else:
        a(f"v_and_b32 v{dst}, 0xffff0000, v{src}")


def weave(a, mf, cur_tags, nxt, start=0, hooks=None, waits=None, skip=()):
    queue = list(cur_tags)
    waits = sorted(waits) if waits is not None else list(range(len(mf)))
    done = -1
    k = 0
    for i, (txt, need) in enumerate(mf):
        if i in waits:
            nxtw = min([w for w in waits if w > i], default=len(mf))
            needs = [t for _, nd in mf[i:nxtw] for t in nd]
            last = max([cur_tags.index(t) for t in needs], default=-1)
            if last > done:
                n = len(queue) - 1 - last
                a(f"s_waitcnt lgkmcnt({min(n, 15)})")
                done = last if n <= 15 else len(queue) - 1 - 15
        a(txt)
        if hooks and i in hooks:
            a(hooks[i])
            if "lgkmcnt(0)" in hooks[i]:
                done = len(queue) - 1
        if i >= start and i not in skip and k < len(nxt):
            a(nxt[k][0])
            queue.append(("n", k))
            k += 1
    assert k == len(nxt)


def phi(a, regs, tmp, s_l2e, s_eps, packed=True):
    if packed:
        return phi_packed(a, regs, tmp, s_l2e, s_eps)
    n = len(regs)
    for i in range(n):
        a(f"v_mul_f32 v{tmp+i}, s{s_l2e}, v{regs[i]}")
    for i in range(n):
        a(f"v_exp_f32 v{tmp+i}, v{tmp+i} clamp")
    for i in range(n):
        a(f"v_add_f32 v{regs[i]}, 1.0, v{regs[i]}")
    for i in range(n):
        a(f"v_max_f32 v{regs[i]}, v{regs[i]}, v{tmp+i}")
    for i in range(n):
        a(f"v_add_f32 v{regs[i]}, s{s_eps}, v{regs[i]}")


def phi_packed(a, regs, tmp, s_l2e, s_eps):
    n = len(regs)
    assert all(regs[i] % 2 == 0 and regs[i + 1] == regs[i] + 1 for i in range(0, n, 2)) and tmp % 2 == 0
    for i in range(0, n, 2):
        a(f"v_pk_mul_f32 {vr(tmp+i,2)}, {vr(regs[i],2)}, s[{s_l2e}:{s_l2e+1}]")
    for i in range(n):
        a(f"v_exp_f32 v{tmp+i}, v{tmp+i} clamp")
    for i in range(0, n, 2):
        a(f"v_pk_add_f32 {vr(regs[i],2)}, {vr(regs[i],2)}, s[{s_eps+2}:{s_eps+3}]")
    for i in range(n):
        a(f"v_max_f32 v{regs[i]}, v{regs[i]}, v{tmp+i}")
    for i in range(0, n, 2):
        a(f"v_pk_add_f32 {vr(regs[i],2)}, {vr(regs[i],2)}, s[{s_eps}:{s_eps+1}]")


def flag_off(typ, s_group, s_prod, dst, a):
    a(f"s_lshl_b32 s{dst}, s{s_group}, 4")
    a(f"s_add_u32 s{dst}, s{dst}, s{s_prod}")
    a(f"s_lshl_b32 s{dst}, s{dst}, 8")
    a(f"s_add_u32 s{dst}, s{dst}, {WS_FL + typ*65536:#x}")


def signal(a, s_off, idx_bytes, vt, drain=False):
    a(f"v_mov_b32 v{vt}, s{S_NONCE}")
    a(f"v_mov_b32 v{vt+1}, {idx_bytes}" if isinstance(idx_bytes, int) else f"v_mov_b32 v{vt+1}, s{idx_bytes[0]}")
    if drain:
        a("s_waitcnt vmcnt(0)")
    a("s_mov_b64 exec, 1")
    a(f"buffer_store_dword v{vt}, v{vt+1}, {sr(R_WS)}, s{s_off} offen sc1")
    a("s_mov_b64 exec, -1")


def poll_lines(a, v_off, s_base, nd, vt, st, prods=range(16)):
    lab = a.newlab("L_poll")
    done = a.newlab("L_pdone")
    mask = sum(((1 << nd) - 1) << (4 * i) for i in prods)
    a(f"s_mov_b32 s{st}, {mask & 0xffffffff:#x}")
    a(f"s_mov_b32 s{st+1}, {mask >> 32:#x}")
    a(f"s_mov_b32 s{st+2}, 0")
    a.label(lab)
    a(f"buffer_load_dword v{vt}, v{v_off}, {sr(R_WS)}, s{s_base} offen sc1")
    a("s_waitcnt vmcnt(0)")
    a(f"v_cmp_eq_u32 vcc, s{S_NONCE}, v{vt}")
    a(f"s_add_u32 s{st+2}, s{st+2}, 1")
    a(f"s_and_b64 vcc, vcc, s[{st}:{st+1}]")
    a(f"s_cmp_eq_u64 vcc, s[{st}:{st+1}]")
    a(f"s_cbranch_scc1 {done}")
    a(f"s_cmp_lt_u32 s{st+2}, {SPIN_MAX}")
    a(f"s_cbranch_scc1 {lab}")
    a.label(done)


def poll_mask(a, v_off, s_base, smask, vt, st, v_have=None):
    lab = a.newlab("L_pm")
    done = a.newlab("L_pmd")
    if v_have is not None:
        a(f"v_cmp_eq_u32 vcc, s{S_NONCE}, v{v_have}\ns_nop 3\ns_and_b64 vcc, vcc, s[{smask}:{smask+1}]\ns_cmp_eq_u64 vcc, s[{smask}:{smask+1}]\ns_cbranch_scc1 {done}")
    a(f"s_mov_b32 s{st}, 0")
    a.label(lab)
    a(f"buffer_load_dword v{vt}, v{v_off}, {sr(R_WS)}, s{s_base} offen sc1")
    a("s_waitcnt vmcnt(0)")
    a(f"v_cmp_eq_u32 vcc, s{S_NONCE}, v{vt}")
    a(f"s_add_u32 s{st}, s{st}, 1")
    a(f"s_and_b64 vcc, vcc, s[{smask}:{smask+1}]")
    a(f"s_cmp_eq_u64 vcc, s[{smask}:{smask+1}]")
    a(f"s_cbranch_scc1 {done}")
    a(f"s_cmp_lt_u32 s{st}, {SPIN_MAX}")
    a(f"s_cbranch_scc1 {lab}")
    a.label(done)


def poll_pipe(a, v_off, s_base, nd, vt, st, prods=range(16), gap=4):
    lab = a.newlab("L_pp")
    done = a.newlab("L_ppd")
    mask = sum(((1 << nd) - 1) << (4 * i) for i in prods)
    a(f"s_mov_b32 s{st}, {mask & 0xffffffff:#x}")
    a(f"s_mov_b32 s{st+1}, {mask >> 32:#x}")
    a(f"s_mov_b32 s{st+2}, 0")
    for i in range(2):
        a(f"buffer_load_dword v{vt+i}, v{v_off}, {sr(R_WS)}, s{s_base} offen sc1")
        a(f"s_sleep {gap}")
    a.label(lab)
    for i in range(3):
        a(f"buffer_load_dword v{vt+(i+2)%3}, v{v_off}, {sr(R_WS)}, s{s_base} offen sc1")
        a("s_waitcnt vmcnt(2)")
        a(f"v_cmp_eq_u32 vcc, s{S_NONCE}, v{vt+i}")
        a(f"s_add_u32 s{st+2}, s{st+2}, 1")
        a(f"s_and_b64 vcc, vcc, s[{st}:{st+1}]")
        a(f"s_cmp_eq_u64 vcc, s[{st}:{st+1}]")
        a(f"s_cbranch_scc1 {done}")
        a(f"s_sleep {gap}")
    a(f"s_cmp_lt_u32 s{st+2}, {3*SPIN_MAX}")
    a(f"s_cbranch_scc1 {lab}")
    a.label(done)


def lds_poll(a, v_addr, off, target, vt, st):
    lab = a.newlab("L_lp")
    done = a.newlab("L_lpd")
    a(f"s_mov_b32 s{st+1}, 0")
    a.label(lab)
    a(f"ds_read_b32 v{vt}, v{v_addr} offset:{off}")
    a("s_waitcnt lgkmcnt(0)")
    a(f"v_readfirstlane_b32 s{st}, v{vt}")
    a(f"s_add_u32 s{st+1}, s{st+1}, 1")
    a(f"s_cmp_ge_u32 s{st}, {target}")
    a(f"s_cbranch_scc1 {done}")
    a(f"s_cmp_lt_u32 s{st+1}, {SPIN_MAX*16}")
    a(f"s_cbranch_scc1 {lab}")
    a.label(done)


def gen_prologue(a, cfg):
    if cfg.get("map", 2) == 0:
        MAPA, MAPB = "s_and_b32 s74, s73, 7", "s_lshr_b32 s74, s73, 3"
    elif cfg.get("map", 2) == 1:
        MAPA, MAPB = "s_lshr_b32 s74, s73, 2", "s_and_b32 s74, s73, 3"
    else:
        MAPA, MAPB = "s_and_b32 s74, s73, 7", "s_lshr_b32 s74, s73, 3\ns_sub_u32 s74, 3, s74"
    a(f"""
    s_cmp_ge_u32 s2, 256
    s_cbranch_scc1 L_end
    s_load_dwordx16 s[16:31], s[0:1], 0
    s_load_dwordx8 s[32:39], s[0:1], 64
    s_load_dwordx2 s[40:41], s[0:1], 96
    v_lshrrev_b32 v1, 6, v0
    v_and_b32 v{LANE}, 63, v0
    s_and_b32 s72, s2, 7
    v_readfirstlane_b32 s{S_WAVE}, v1
    s_lshr_b32 s73, s2, 3
    s_and_b32 s{S_MT}, s72, 1
    s_lshl_b32 s{S_MT}, s{S_MT}, 3
    {MAPA}
    s_add_u32 s{S_MT}, s{S_MT}, s74
    s_lshr_b32 s{S_HP}, s72, 1
    s_lshl_b32 s{S_HP}, s{S_HP}, 2
    {MAPB}
    s_add_u32 s{S_HP}, s{S_HP}, s74
    s_and_b32 s{S_MT3}, s72, 3
    s_lshl_b32 s{S_MT3}, s{S_MT3}, 2
    s_and_b32 s74, s73, 3
    s_add_u32 s{S_MT3}, s{S_MT3}, s74
    s_lshr_b32 s{S_NT3}, s72, 2
    s_lshl_b32 s{S_NT3}, s{S_NT3}, 3
    s_lshr_b32 s74, s73, 2
    s_add_u32 s{S_NT3}, s{S_NT3}, s74
    """)
    a(f"s_add_u32 s{S_HQ}, s{S_HP}, {cfg.get('hq', 4)}\ns_and_b32 s{S_HQ}, s{S_HQ}, 15")
    rot = cfg.get("rot", 2)
    if rot == 0:
        a(f"s_mov_b32 s{S_ROT}, 0")
    elif rot == 1:
        a(f"s_lshl_b32 s{S_ROT}, s72, 1")
    elif rot == 2:
        a(f"s_add_u32 s{S_ROT}, s{S_MT}, s{S_HP}\ns_and_b32 s{S_ROT}, s{S_ROT}, 15")
    elif rot == 3:
        a(f"s_lshl_b32 s{S_ROT}, s{S_HP}, 1\ns_add_u32 s{S_ROT}, s{S_ROT}, s{S_MT}\ns_lshl_b32 s{S_ROT}, s{S_ROT}, 1\ns_and_b32 s{S_ROT}, s{S_ROT}, 15")
    elif rot == 4:
        a(f"s_lshl_b32 s{S_ROT}, s{S_HP}, 1\ns_add_u32 s{S_ROT}, s{S_ROT}, s{S_MT}\ns_lshl_b32 s{S_ROT}, s{S_ROT}, 1\ns_lshr_b32 s74, s{S_MT}, 3\ns_add_u32 s{S_ROT}, s{S_ROT}, s74\ns_and_b32 s{S_ROT}, s{S_ROT}, 15")
    if STAMPS:
        for i in range(14):
            a(f"s_mov_b32 s{84+i}, 0")
    a("s_waitcnt lgkmcnt(0)")
    srd(a, R_WS, P_WS, WS_SIZE)
    stamp(a, 0)
    a(f"""
    s_cmp_lt_u32 s{S_WAVE}, 4
    s_cbranch_scc1 L_compute
    s_cmp_ge_u32 s{S_WAVE}, 6
    s_cbranch_scc1 L_prepass
    """)


def gen_loader(a, cfg):
    srd(a, R_A, P_X, 4 << 20)
    srd(a, R_B, P_WQKV, 6 << 20)
    if cfg.get("prio", 0) & 1:
        a("s_setprio 2")
    XG, WG = 1, 3
    a(f"""
    s_sub_u32 s71, s{S_WAVE}, 4
    v_lshrrev_b32 v5, 3, v{LANE}
    v_and_b32 v6, 7, v{LANE}
    v_lshrrev_b32 v7, 4, v{LANE}
    v_xor_b32 v8, v6, v7
    v_lshlrev_b32 v8, 4, v8
    v_lshlrev_b32 v9, 11, v5
    v_add_u32 v{XG}, v8, v9
    v_xor_b32 v{XG+1}, 64, v{XG}
    v_and_b32 v7, 1, v7
    v_lshlrev_b32 v7, 1, v7
    v_xor_b32 v8, v6, v7
    v_lshlrev_b32 v8, 4, v8
    v_mul_u32_u24 v9, 6144, v5
    v_add_u32 v{WG}, v8, v9
    v_xor_b32 v{WG+1}, 64, v{WG}
    s_lshl_b32 s72, s{S_MT}, 18
    s_lshl_b32 s73, s71, 17
    s_add_u32 s72, s72, s73
    s_lshl_b32 s73, s71, 13
    s_lshl_b32 s74, s71, 12
    s_add_u32 s74, s74, 16384
    s_lshl_b32 s75, s{S_HP}, 7
    s_mul_i32 s76, s71, 196608
    s_add_u32 s75, s75, s76
    s_lshl_b32 s4, s{S_HQ}, 7
    s_add_u32 s4, s4, s76
    """)
    first_slot = NS - 1

    def issue():
        a(f"""
        s_add_u32 s78, s{S_ROT}, s76
        s_and_b32 s78, s78, 15
        s_lshl_b32 s79, s78, 7
        s_add_u32 s79, s79, s72
        s_mul_i32 s80, s78, 393216
        s_add_u32 s5, s80, s4
        s_add_u32 s80, s80, s75
        s_add_u32 s81, s77, s73
        s_add_u32 s82, s77, s74
        """)
        for i in range(8):
            a(f"s_add_u32 m0, s81, {i*1024}")
            a(f"s_add_u32 s83, s79, {i*16384}")
            a(f"buffer_load_dwordx4 v{XG + (i & 1)}, {sr(R_A)}, s83 offen {'nt' if cfg.get('ntx', 0) else ''} lds")
        for seg in range(3):
            for i in range(4):
                a(f"s_add_u32 m0, s82, {seg*8192 + i*1024}")
                a(f"s_add_u32 s83, {'s5' if seg == 0 else 's80'}, {seg*2048 + i*49152}")
                a(f"buffer_load_dwordx4 v{WG + (i & 1)}, {sr(R_B)}, s83 offen {'nt' if cfg.get('ntw', 0) else ''} lds")
        a(f"""
        s_add_u32 s76, s76, 1
        s_add_u32 s77, s77, {SLOT}
        s_cmp_eq_u32 s77, {NS*SLOT}
        s_cselect_b32 s77, 0, s77
        """)

    probe(a, cfg, 4)
    a(f"s_mov_b32 s76, 0\ns_mov_b32 s77, {first_slot*SLOT}")
    stamp(a, 1)
    prof = 0
    a.label("L_ld_loop")
    issue()
    a("""
    s_cmp_lt_u32 s76, 2
    s_cbranch_scc1 L_ld_loop
    s_cmp_eq_u32 s76, 3
    s_cbranch_scc1 L_ld_loop
    s_cmp_eq_u32 s76, 16
    s_cbranch_scc1 L_ld_done
    s_cmp_eq_u32 s76, 2
    s_cbranch_scc1 L_ld_first
    s_waitcnt vmcnt(40)
    s_barrier
    """)
    if cfg.get("bartl", 0):
        a(("s_memtime" if STAMPS == 2 else "s_memrealtime") + " s[100:101]\ns_waitcnt lgkmcnt(0)")
        for b in range(1, 13):
            a(f"s_cmp_eq_u32 s76, {b+3}\ns_cselect_b32 s{84+b}, s100, s{84+b}")
    PREBAR = "s_barrier" if cfg.get("prebar", 0) else ""
    a(f"""
    s_branch L_ld_loop
    L_ld_first:
    {PREBAR}
    s_waitcnt vmcnt(20)
    s_barrier
    """)
    if cfg.get("ldtl", 0): stamp(a, 8)
    a("s_branch L_ld_loop")
    a.label("L_ld_done")
    if cfg.get("ldtl", 0): stamp(a, 10)
    a("s_waitcnt vmcnt(40)\ns_barrier")
    if cfg.get("ldtl", 0): stamp(a, 11)
    late = cfg.get("taillate", 1)
    if late:
        hp = 1 if cfg.get("hpf", 1) else 0
        if hp:
            h_prefetch(a)
        a(f"s_waitcnt vmcnt({20+hp})\ns_barrier")
        if cfg.get("ldtl", 0): stamp(a, 12)
        a(f"s_waitcnt vmcnt({hp})\ns_barrier")
        if cfg.get("ldtl", 0): stamp(a, 13)
    nh = h_loads(a)
    if cfg.get("wopf", 1):
        srd(a, R_A, P_WO, 2 << 20)
        a(f"""
        s_and_b32 s4, s{S_MT3}, 3
        s_lshl_b32 s4, s4, 1
        s_add_u32 s4, s4, s71
        s_lshl_b32 s4, s4, 18
        s_lshl_b32 s5, s{S_NT3}, 7
        s_add_u32 s4, s4, s5
        s_add_u32 s5, s4, {64*2048}
        v_lshlrev_b32 v77, 11, v{LANE}
        buffer_load_dword v78, v77, {sr(R_A)}, s4 offen
        buffer_load_dword v79, v77, {sr(R_A)}, s5 offen
        """)
        nh += 2
    pair_order(a)
    if not late:
        a(f"s_waitcnt vmcnt({20+nh})\ns_barrier")
        a(f"s_waitcnt vmcnt({nh})\ns_barrier")
    stamp(a, 2)
    a("s_branch L_conv")


HD, HE, HFX, HDV = 48, 64, 72, 73


def h_loads(a):
    srd(a, R_C, P_H, 4 << 20)
    srd(a, R_D, P_D, 2048)
    a(f"""
    s_lshl_b32 s4, s2, 2
    s_add_u32 s4, s4, s{S_WAVE}
    s_sub_u32 s4, s4, 4
    s_lshl_b32 s5, s4, 12
    s_lshl_b32 s6, s4, 1
    v_lshlrev_b32 v74, 4, v{LANE}
    v_lshrrev_b32 v75, 4, v{LANE}
    v_and_b32 v76, 15, v{LANE}
    v_add_u32 v75, v75, v76
    v_subrev_u32 v75, 15, v75
    v_max_i32 v75, 0, v75
    v_lshlrev_b32 v75, 1, v75
    v_mov_b32 v76, 0
    """)
    for j in range(4):
        a(f"buffer_load_dwordx4 {vr(HD+4*j)}, v74, {sr(R_C)}, s5 offen offset:{j*1024} {NTH[0]}")
        a(f"buffer_load_dwordx2 {vr(HE+2*j,2)}, v74, {sr(R_C)}, s5 offen offset:{j*1024+16} {NTH[0]}")
    a(f"buffer_load_ushort v{HFX}, v75, {sr(R_C)}, s5 offen")
    a(f"buffer_load_ushort v{HDV}, v76, {sr(R_D)}, s6 offen")
    return 10


SP = list(range(4, 16)) + [56, 57, 58, 59]


def pair_order(a):
    a(f"s_and_b32 s76, s{S_NT3}, 7\ns_mul_i32 s76, s76, 3\ns_lshr_b32 s76, s76, 1")
    for j in range(12):
        a(f"""
        s_add_u32 s77, s76, {j}
        s_cmp_ge_u32 s77, 12
        s_cselect_b32 s79, 12, 0
        s_sub_u32 s77, s77, s79
        s_mul_i32 s79, s77, 11
        s_lshr_b32 s79, s79, 5
        s_add_u32 s77, s77, s79
        s_lshl_b32 s{SP[j]}, s77, 11
        """)
    for j in range(4):
        a(f"""
        s_add_u32 s77, s{S_NT3}, {j}
        s_and_b32 s77, s77, 3
        s_lshl_b32 s77, s77, 13
        s_add_u32 s{SP[12+j]}, s77, {3*2048}
        """)


def wo_dma(a, j, i):
    base = (L_WE + j * 8192) if j < 8 else (j - 8) * 8192
    return [f"s_lshl_b32 s74, s{SP[j]}, 6", f"s_add_u32 m0, s73, {base + i*1024}",
            f"s_add_u32 s74, s74, s72", f"buffer_load_dwordx4 v{WOV}, {sr(R_A)}, s{74 if i == 0 else 75} offen {NTWO[0]} lds"] if i == 0 else \
           [f"s_add_u32 m0, s73, {base + i*1024}", "s_add_u32 s75, s74, 16384",
            f"buffer_load_dwordx4 v{WOV}, {sr(R_A)}, s75 offen {NTWO[0]} lds"]


WOV = 167
NTH = ['']
NTWO = ['']


def h_prefetch(a):
    srd(a, R_C, P_H, 4 << 20)
    a(f"""
    s_lshl_b32 s4, s2, 2
    s_add_u32 s4, s4, s{S_WAVE}
    s_sub_u32 s4, s4, 4
    s_lshl_b32 s4, s4, 12
    v_lshlrev_b32 v77, 6, v{LANE}
    buffer_load_dword v78, v77, {sr(R_C)}, s4 offen
    """)


def u_loads(a):
    a(f"""
    s_lshl_b32 s82, s2, 2
    s_lshl_b32 s83, s71, 1
    s_add_u32 s82, s82, s83
    s_lshl_b32 s82, s82, 12
    s_add_u32 s82, s82, {WS_UT:#x}
    s_add_u32 s83, s82, 4096
    """)
    for c in range(2):
        for j in range(4):
            a(f"buffer_load_dwordx4 {vr(16+16*c+4*j)}, v8, {sr(R_WS)}, s{82+c} offen offset:{j*1024} sc1")


def gen_prepass(a, cfg):
    a.label("L_prepass")
    vm = VM(a)
    srd(a, R_A, P_K, 4 << 20)
    srd(a, R_B, P_V, 4 << 20)
    srd(a, R_C, P_X, 4 << 20)
    KR, VR, WT, GX, GW = 16, 60, 92, 108, 140
    KA, KB, SKA, GA, UA = 2, 3, 4, 5, 6
    T = 152
    a(f"s_sub_u32 s71, s{S_WAVE}, 6")
    srd(a, R_D, P_DBG, 256)
    a(f"""
    s_cmp_lg_u32 s2, 0
    s_cbranch_scc1 L_notag
    s_cmp_lg_u32 s71, 0
    s_cbranch_scc1 L_notag
    s_memrealtime s[72:73]
    s_waitcnt lgkmcnt(0)
    s_or_b32 s72, s72, 1
    v_mov_b32 v13, s72
    v_mov_b32 v14, 0
    s_mov_b64 exec, 1
    buffer_store_dword v13, v14, {sr(R_D)}, 0 offen sc1
    s_mov_b64 exec, -1
    """)
    a.label("L_notag")
    if cfg.get("tlbw", 0):
        MB = 1 << 20
        lab = a.newlab("L_tw")
        a(f"s_cmp_eq_u32 s71, 0\ns_cbranch_scc0 {lab}")
        for off in list(range(0, 16 * MB, 2 * MB)) + [WS_FL]:
            a(f"s_add_u32 s4, s{P_WS}, {off}\ns_addc_u32 s5, s{P_WS+1}, 0\ns_load_dword s99, s[4:5], 0")
        for off in (0, 2 * MB, 4 * MB - 64):
            a(f"s_add_u32 s4, s{P_OUT}, {off}\ns_addc_u32 s5, s{P_OUT+1}, 0\ns_load_dword s99, s[4:5], 0")
        a(f"s_branch {lab}_e")
        a.label(lab)
        for ptr, offs in ((P_K, (0, 2 * MB, 4 * MB - 64)), (P_V, (0, 2 * MB, 4 * MB - 64)), (P_H, (0, 2 * MB, 4 * MB - 64)),
                          (P_WO, (0, 2 * MB - 64)), (P_SK, (0,)), (P_D, (0,)), (P_GW, (0,))):
            for off in offs:
                a(f"s_add_u32 s4, s{ptr}, {off}\ns_addc_u32 s5, s{ptr+1}, 0\ns_load_dword s99, s[4:5], 0")
        a.label(lab + "_e")
    pf = cfg.get("pf", 0)
    PFA, PFD = 246, 244
    if pf:
        a(f"""
        s_cmp_eq_u32 s71, 0
        s_cbranch_scc0 L_pf_w
        """)
        srd(a, 8, P_X, 4 << 20)
        srd(a, 12, P_H, 4 << 20)
        a(f"""
        v_lshrrev_b32 v8, 3, v{LANE}
        v_lshlrev_b32 v8, 11, v8
        v_and_b32 v9, 7, v{LANE}
        v_lshlrev_b32 v9, 6, v9
        v_add_u32 v8, v8, v9
        s_lshl_b32 s72, s2, 14
        v_add_u32 v{PFA}, s72, v8
        s_mov_b32 s6, 512
        s_mov_b32 s7, 0
        s_lshl_b32 s5, s2, 14
        s_branch L_pf_go
        L_pf_w:
        """)
        srd(a, 8, P_WQKV, 6 << 20)
        srd(a, 12, P_WO, 2 << 20)
        a(f"""
        v_and_b32 v8, 31, v{LANE}
        v_min_u32 v8, 23, v8
        v_lshlrev_b32 v8, 6, v8
        v_lshrrev_b32 v9, 5, v{LANE}
        v_mul_u32_u24 v9, 393216, v9
        v_add_u32 v8, v8, v9
        s_lshr_b32 s72, s2, 2
        s_mul_i32 s72, s72, 6144
        s_and_b32 s73, s2, 3
        s_mul_i32 s73, s73, 1536
        s_add_u32 s72, s72, s73
        v_add_u32 v{PFA}, s72, v8
        s_mov_b32 s6, 1572864
        s_mov_b32 s7, 786432
        s_lshl_b32 s5, s2, 13
        L_pf_go:
        """)

    def prefetch(group):
        if not pf:
            return
        a(f"s_mul_i32 s4, s6, {group}")
        a(f"buffer_load_dword v{PFD}, v{PFA}, s[8:11], s4 offen")
        a("s_add_u32 s4, s4, s7")
        a(f"buffer_load_dword v{PFD+1}, v{PFA}, s[8:11], s4 offen")
        vm.issue("pf", 2)

    def prefetch_late():
        if not pf:
            return
        a(f"v_lshlrev_b32 v{PFA}, 6, v{LANE}")
        for j in range(4):
            a(f"s_add_u32 s4, s5, {j*4096}")
            a(f"buffer_load_dword v{PFD+(j&1)}, v{PFA}, s[12:15], s4 offen")
        vm.issue("pf", 4)

    prefetch(1)
    if cfg.get("c3pf", 0):
        srd(a, 8, P_WQKV, 6 << 20)
        a(f"""
        s_cmp_eq_u32 s71, 0
        s_cbranch_scc0 L_c3_skip
        s_lshr_b32 s4, s{S_HP}, 2
        s_and_b32 s5, s4, 1
        s_lshl_b32 s6, s4, 2
        s_add_u32 s6, s6, 3
        s_lshl_b32 s7, s5, 2
        s_add_u32 s6, s6, s7
        s_and_b32 s6, s6, 15
        s_cmp_eq_u32 s5, 0
        s_cselect_b32 s7, 1, 0
        s_lshl_b32 s6, s6, 7
        v_and_b32 v8, 31, v{LANE}
        s_lshr_b32 s4, s2, 3
        s_lshl_b32 s4, s4, 5
        v_add_u32 v8, s4, v8
        v_mul_u32_u24 v8, 6144, v8
        v_lshrrev_b32 v9, 5, v{LANE}
        v_add_u32 v9, 1, v9
        v_mul_lo_u32 v9, v9, s7
        v_lshlrev_b32 v9, 11, v9
        v_add_u32 v8, v8, v9
        buffer_load_dword v244, v8, s[8:11], s6 offen
        L_c3_skip:
        """)
        vm.issue("pf")
    a(f"""
    v_and_b32 v8, 7, v{LANE}
    v_lshrrev_b32 v9, 3, v{LANE}
    s_lshl_b32 s72, s71, 3
    s_lshl_b32 s73, s{S_MT}, 4
    s_add_u32 s72, s72, s73
    v_add_u32 v9, s72, v9
    s_lshl_b32 s73, s{S_HP}, 6
    v_lshlrev_b32 v10, 3, v8
    v_add_u32 v10, s73, v10
    v_lshlrev_b32 v11, 14, v9
    v_lshlrev_b32 v12, 1, v10
    v_add_u32 v{KB}, v11, v12
    v_subrev_u32 v{KA}, 6144, v{KB}
    v_lshlrev_b32 v{SKA}, 3, v10
    v_lshlrev_b32 v{GA}, 5, v{LANE}
    v_lshlrev_b32 v11, 12, v10
    v_lshlrev_b32 v12, 4, v9
    v_add_u32 v{UA}, v11, v12
    s_mov_b32 s74, 4096
    s_mov_b32 s75, 8192
    s_mov_b32 s76, 12288
    s_lshl_b32 s77, s{S_MT}, 7
    s_lshl_b32 s78, s{S_HP}, 3
    s_add_u32 s77, s77, s78
    s_lshl_b32 s78, s71, 2
    s_add_u32 s77, s77, s78
    s_lshl_b32 s78, s77, 11
    """)
    srd(a, 8, P_SK, 8192)
    srd(a, 12, P_GW, 2048)
    soff = ["0", "s74", "s75", "s76"]

    def rowload(dst, va, srdn, i):
        a(f"buffer_load_dwordx4 {vr(dst)}, v{va}, {sr(srdn)}, {soff[i//2]} offen offset:{(i%2)*2048} {'nt' if cfg.get('ntpre', 1) else ''}")
        vm.issue("pre")

    loads = []
    for i in range(3):
        loads.append(lambda i=i: rowload(KR + 4 * i, KA, R_A, i))
    for i in range(8):
        loads.append(lambda i=i: rowload(KR + 12 + 4 * i, KB, R_A, i))
    for i in range(8):
        loads.append(lambda i=i: rowload(VR + 4 * i, KB, R_B, i))

    def wload(i):
        a(f"buffer_load_dwordx4 {vr(WT+4*i)}, v{SKA}, s[8:11], 0 offen offset:{16*i}")
        vm.issue("pre")
    for i in range(4):
        loads.append(lambda i=i: wload(i))

    def gload(r, i):
        a(f"s_add_u32 s79, s78, {r*2048}")
        a(f"buffer_load_dwordx4 {vr(GX+8*r+4*i)}, v{GA}, {sr(R_C)}, s79 offen offset:{16*i}")
        vm.issue("gate")

    def gwload(i):
        a(f"buffer_load_dwordx4 {vr(GW+4*i)}, v{GA}, s[12:15], 0 offen offset:{16*i}")
        vm.issue("gate")
    gloads = [lambda r=r, i=i: gload(r, i) for r in range(4) for i in range(2)] + [lambda i=i: gwload(i) for i in range(2)]

    def tagload():
        a(f"v_mov_b32 v14, 0\nbuffer_load_dword v15, v14, {sr(R_D)}, 0 offen sc1")
        vm.issue("tag")

    def channel(j):
        if cfg.get("exp", 0) & 4:
            return
        dw, half = j >> 1, j & 1
        W, Kf, Of, P = T, T + 4, T + 16, T + 24
        for tau in range(4):
            unpack(a, W + tau, WT + 2 * j + (tau >> 1), tau & 1)
        for i in range(11):
            unpack(a, Kf + i, KR + 4 * i + dw, half)
        for i in range(8):
            a(f"v_mul_f32 v{Of+i}, v{W+3}, v{Kf+i}")
        for tau in (2, 1, 0):
            for i in range(8):
                a(f"v_fmac_f32 v{Of+i}, v{W+tau}, v{Kf+i+3-tau}")
        for i in range(8):
            unpack(a, Kf + i, VR + 4 * i + dw, half)
        for i in range(8):
            a(f"v_mul_f32 v{Of+i}, v{Of+i}, v{Kf+i}")
        P = P + 4 * (j & 1)
        for m in range(4):
            a(f"v_cvt_pk_bf16_f32 v{P+m}, v{Of+7-2*m}, v{Of+6-2*m}")
        a(f"s_mov_b32 s80, {WS_UT + j*4096:#x}")
        a(f"buffer_store_dwordx4 {vr(P)}, v{UA}, {sr(R_WS)}, s80 offen sc1 {'nt' if cfg.get('ntut', 0) else ''}")
        vm.issue("ut")


    def gate():
        vm.wait("gate")
        Z = T + 32
        for r in range(4):
            a(f"v_mov_b32 v{Z+r}, 0")
        for i in range(8):
            for r in range(4):
                a(f"v_dot2_f32_bf16 v{Z+r}, v{GX+8*r+i}, v{GW+i}, v{Z+r}")
        for ctl in ("row_shr:1 row_mask:0xf", "row_shr:2 row_mask:0xf", "row_shr:4 row_mask:0xf",
                    "row_shr:8 row_mask:0xf", "row_bcast:15 row_mask:0xa", "row_bcast:31 row_mask:0xc"):
            a("s_nop 1")
            for r in range(4):
                a(f"v_add_f32_dpp v{Z+r}, v{Z+r}, v{Z+r} {ctl} bank_mask:0xf")
        a(f"s_mov_b32 s80, {LOG2E ^ 0x80000000:#x}")
        for r in range(4):
            a(f"v_mul_f32 v{Z+r}, s80, v{Z+r}")
        for r in range(4):
            a(f"v_exp_f32 v{Z+r}, v{Z+r}")
        a("s_nop 0")
        for r in range(4):
            a(f"v_add_f32 v{Z+r}, 1.0, v{Z+r}")
        for r in range(4):
            a(f"v_rcp_f32 v{Z+r}, v{Z+r}")
        a(f"""
        s_lshl_b32 s80, s77, 2
        s_add_u32 s80, s80, {WS_G:#x}
        v_mov_b32 v{Z+4}, 0
        v_cmp_eq_u32 vcc, 63, v{LANE}
        s_and_saveexec_b64 s[82:83], vcc
        buffer_store_dwordx4 {vr(Z)}, v{Z+4}, {sr(R_WS)}, s80 offen sc1
        s_mov_b64 exec, s[82:83]
        """)
        vm.issue("g")

    def tagcheck():
        lab = a.newlab("L_tag")
        vm.wait("tag")
        a(f"v_readfirstlane_b32 s{S_NONCE}, v15\ns_mov_b32 s80, 0\ns_cmp_lg_u32 s{S_NONCE}, 0\ns_cbranch_scc1 L_tagok")
        a.label(lab)
        a(f"""
        buffer_load_dword v15, v14, {sr(R_D)}, 0 offen sc1
        s_waitcnt vmcnt(0)
        v_readfirstlane_b32 s{S_NONCE}, v15
        s_add_u32 s80, s80, 1
        s_cmp_lg_u32 s{S_NONCE}, 0
        s_cbranch_scc1 L_tagok
        s_cmp_lt_u32 s80, {SPIN_MAX}
        s_cbranch_scc1 {lab}
        """)
        a.label("L_tagok")

    def publish():
        if cfg.get("probe", 0) == 7:
            pass
        vm.drain()
        flag_off(0, S_HP, S_MT, 80, a)
        a("s_lshl_b32 s81, s71, 2")
        signal(a, 80, ("81", ), 8)

    def some(lst, lo, hi):
        return lambda: [f() for f in lst[lo:hi]]
    wait_pre = lambda: vm.wait("pre")
    ch = lambda j: (lambda: channel(j))
    sched = cfg.get("sched", 13)
    if sched == 0:
        plan = {-1: [some(loads, 0, 23), some(gloads, 0, 10), tagload],
                2: [wait_pre, ch(0), ch(1)], 3: [ch(2), ch(3)], 4: [ch(4), ch(5)], 5: [ch(6), ch(7)],
                6: [gate], 7: [tagcheck], 8: [publish]}
    elif sched == 1:
        plan = {1: [some(loads, 0, 11)], 2: [some(loads, 11, 23)], 3: [some(gloads, 0, 10), tagload],
                4: [wait_pre, ch(0), ch(1)], 5: [ch(2), ch(3)], 6: [ch(4), ch(5)], 7: [ch(6), ch(7)],
                8: [gate, tagcheck], 10: [publish]}
    elif sched == 2:
        plan = {0: [some(loads, 0, 4)], 1: [some(loads, 4, 8)], 2: [some(loads, 8, 12)], 3: [some(loads, 12, 16)],
                4: [some(loads, 16, 20)], 5: [some(loads, 20, 23), tagload], 6: [some(gloads, 0, 5)],
                7: [wait_pre, some(gloads, 5, 10), ch(0), ch(1)], 8: [ch(2), ch(3), ch(4)], 9: [ch(5), ch(6), ch(7)],
                10: [gate, tagcheck], 11: [publish]}
    elif sched == 3:
        plan = {-1: [some(loads, 0, 23), tagload], 2: [wait_pre, ch(0)], 3: [ch(1)], 4: [ch(2), some(gloads, 0, 5)],
                5: [ch(3), some(gloads, 5, 10)], 6: [ch(4)], 7: [ch(5)], 8: [ch(6)], 9: [ch(7)],
                10: [gate, tagcheck], 11: [publish]}
    elif sched == 4:
        plan = {1: [some(loads, 0, 11)], 2: [some(loads, 11, 23)], 3: [tagload],
                4: [wait_pre, ch(0)], 5: [ch(1)], 6: [ch(2), some(gloads, 0, 5)], 7: [ch(3), some(gloads, 5, 10)],
                8: [ch(4)], 9: [ch(5), tagcheck], 10: [ch(6)], 11: [ch(7)], 12: [gate]}
    elif sched == 5:
        plan = {1: [some(loads, 0, 11)], 2: [some(loads, 11, 23)], 3: [some(gloads, 0, 10), tagload],
                4: [wait_pre, ch(0)], 5: [ch(1)], 6: [ch(2), gate], 7: [ch(3)],
                8: [ch(4)], 9: [ch(5), tagcheck], 10: [ch(6)], 11: [ch(7)], 12: []}
    elif sched == 6:
        plan = {0: [some(loads, 0, 11)], 1: [some(loads, 11, 23)], 2: [some(gloads, 0, 10), tagload],
                3: [wait_pre, ch(0), ch(1)], 4: [ch(2), ch(3)], 5: [ch(4), ch(5)], 6: [ch(6), ch(7)],
                7: [gate, tagcheck], 8: [publish]}
    elif sched == 7:
        plan = {1: [some(loads, 0, 11)], 2: [some(loads, 11, 23)], 3: [some(gloads, 0, 10), tagload],
                4: [wait_pre, ch(0), ch(1)], 5: [ch(2), ch(3)], 6: [ch(4), ch(5)], 7: [ch(6), ch(7), gate],
                8: [tagcheck], 9: [publish]}
    elif sched == 8:
        plan = {-1: [some(loads, 0, 23), some(gloads, 0, 10), tagload],
                1: [wait_pre, ch(0)], 2: [ch(1)], 3: [ch(2)], 4: [ch(3)], 5: [ch(4)], 6: [ch(5)], 7: [ch(6)],
                8: [ch(7)], 9: [gate, tagcheck], 10: [publish]}
    elif sched == 9:
        plan = {-1: [some(loads, 0, 23), some(gloads, 0, 10), tagload],
                0: [wait_pre, ch(0)], 1: [ch(1)], 2: [ch(2)], 3: [ch(3)], 4: [ch(4)], 5: [ch(5)], 6: [ch(6)],
                7: [ch(7)], 8: [gate, tagcheck], 9: [publish]}
    elif sched == 10:
        plan = {1: [some(loads, 0, 23), some(gloads, 0, 10), tagload],
                4: [wait_pre, ch(0)], 5: [ch(1)], 6: [ch(2)], 7: [ch(3)], 8: [ch(4)], 9: [ch(5), tagcheck],
                10: [ch(6)], 11: [ch(7)], 12: [gate]}
    elif sched == 11:
        plan = {1: [some(loads, 0, 23), some(gloads, 0, 10), tagload],
                4: [wait_pre, ch(0), ch(1)], 5: [ch(2), ch(3)], 6: [ch(4), ch(5)], 7: [ch(6), ch(7)],
                8: [gate, tagcheck], 10: [publish]}
    elif sched == 12:
        plan = {1: [some(loads, 0, 23), some(gloads, 0, 10), tagload],
                3: [wait_pre, ch(0)], 4: [ch(1)], 5: [ch(2)], 6: [ch(3)], 7: [ch(4)], 8: [ch(5), tagcheck],
                9: [ch(6)], 10: [ch(7)], 11: [gate], 12: [publish]}
    elif sched == 13:
        plan = {1: [some(loads, 0, 11)], 2: [some(loads, 11, 23)], 3: [tagload],
                4: [wait_pre, ch(0), ch(1)], 5: [ch(2), ch(3)], 6: [ch(4), ch(5)], 7: [ch(6), ch(7)],
                8: [tagcheck], 9: [publish]}
    elif sched == 14:
        plan = {1: [some(loads, 0, 23), tagload],
                4: [wait_pre, ch(0), ch(1)], 5: [ch(2), ch(3)], 6: [ch(4), ch(5)], 7: [ch(6), ch(7)],
                8: [tagcheck], 9: [publish]}
    late_publish = sched in (4, 5, 10)
    for b in range(-1, 13):
        if b == 10 and False:
            pass
        if b == -1 and cfg.get("prebar", 0):
            a("s_barrier")
        if b >= 0:
            a("s_barrier")
        for f in plan.get(b, []):
            f()
    MASK0 = "0x33333333"
    polladdr = f"""
    v_lshrrev_b32 v9, 2, v{LANE}
    v_lshlrev_b32 v10, 8, v9
    v_and_b32 v20, 3, v{LANE}
    v_lshlrev_b32 v20, 2, v20
    v_add_u32 v10, v10, v20
    v_lshlrev_b32 v11, 12, v9
    v_add_u32 v11, v11, v20
    s_lshr_b32 s80, s2, 4
    s_lshl_b32 s80, s80, 12
    s_add_u32 s80, s80, {WS_FL:#x}
    s_lshl_b32 s81, s{S_MT3}, 8
    s_add_u32 s81, s81, {WS_FL:#x}
    """
    if cfg.get("uearly", 0) == 2:
        a(polladdr + f"""
        buffer_load_dword v22, v10, {sr(R_WS)}, s80 offen sc1
        buffer_load_dword v23, v11, {sr(R_WS)}, s81 offen sc1
        """)
    a("s_barrier")
    a(f"s_mov_b32 s{S_GROW}, s77")
    if cfg.get("taillate", 1) and cfg.get("hpf", 1):
        srd(a, R_A, P_H, 4 << 20)
        a(f"""
        s_lshl_b32 s4, s2, 2
        s_add_u32 s4, s4, s{S_WAVE}
        s_sub_u32 s4, s4, 4
        s_lshl_b32 s4, s4, 12
        v_lshlrev_b32 v77, 6, v{LANE}
        buffer_load_dword v78, v77, {sr(R_A)}, s4 offen
        """)

    def tailwork():
        for f in gloads:
            f()
        h_loads(a)
        pair_order(a)
    nh = 20
    if not cfg.get("taillate", 1):
        tailwork()
    if late_publish:
        a(f"s_waitcnt vmcnt({nh})")
        flag_off(0, S_HP, S_MT, 80, a)
        a("s_lshl_b32 s81, s71, 2")
        signal(a, 80, ("81", ), 8)
    a(f"""
    v_mov_b32 v16, 0
    v_mov_b32 v17, 0
    v_mov_b32 v18, 0
    v_mov_b32 v19, 0
    v_mov_b32 v12, {L_FLG}
    v_mov_b32 v13, s{S_NONCE}
    ds_write_b128 v12, v[16:19]
    ds_write_b128 v12, v[16:19] offset:16
    ds_write_b128 v12, v[16:19] offset:32
    ds_write_b128 v12, v[16:19] offset:48
    ds_write_b32 v12, v13 offset:{F_NONCE}
    v_lshlrev_b32 v8, 4, v{LANE}
    s_mul_i32 s82, s71, {2*U_CH}
    s_add_u32 s82, s82, {L_U}
    v_add_u32 v{LANE-2}, s82, v8
    v_and_b32 v9, 31, v{LANE}
    v_lshlrev_b32 v9, 4, v9
    v_add_u32 v9, s82, v9
    ds_write_b128 v9, v[16:19]
    ds_write_b128 v9, v[16:19] offset:{U_CH}
    """)
    check = f"""
    s_mov_b32 s72, {MASK0}
    s_mov_b32 s73, {MASK0}
    s_waitcnt vmcnt(0)
    v_cmp_eq_u32 vcc, s{S_NONCE}, v12
    s_nop 3
    s_and_b64 vcc, vcc, s[72:73]
    s_cmp_eq_u64 vcc, s[72:73]
    """
    polls = f"""
    buffer_load_dword v12, v10, {sr(R_WS)}, s80 offen sc1
    """
    if cfg.get("uearly", 0) != 2:
        a(polladdr)
    if cfg.get("uearly", 0) == 2:
        a("s_waitcnt lgkmcnt(0)\ns_barrier")
        chk2 = check.replace("s_waitcnt vmcnt(0)", f"s_waitcnt vmcnt({nh})").replace("v12", "v22").replace("v13", "v23")
        a(chk2 + f"s_cselect_b32 s{S_URDY}, 1, 0\ns_cbranch_scc0 L_pp_late")
        u_loads(a)
        a.label("L_pp_late")
        a("s_barrier")
        a(f"s_cmp_eq_u32 s{S_URDY}, 1\ns_cbranch_scc1 L_pp_done")
        poll_lines(a, 10, 80, 2, 12, 72)
        poll_lines(a, 11, 81, 2, 12, 72)
        u_loads(a)
        a.label("L_pp_done")
    elif cfg.get("uearly", 0):
        a(polls + "s_waitcnt lgkmcnt(0)\ns_barrier")
        a(check + f"s_cselect_b32 s{S_URDY}, 1, 0\ns_cbranch_scc0 L_pp_late")
        u_loads(a)
        a.label("L_pp_late")
        a("s_barrier")
        a(f"s_cmp_eq_u32 s{S_URDY}, 1\ns_cbranch_scc1 L_pp_done")
        poll_lines(a, 10, 80, 2, 12, 72)
        poll_lines(a, 11, 81, 2, 12, 72)
        u_loads(a)
        a.label("L_pp_done")
    else:
        a("s_waitcnt lgkmcnt(0)\ns_barrier")
        a(polls + "s_barrier")
        if cfg.get("taillate", 1):
            tailwork()
            a(check.replace("s_waitcnt vmcnt(0)", "s_waitcnt vmcnt(20)") + "s_cbranch_scc1 L_pp_ready")
        else:
            a(check + "s_cbranch_scc1 L_pp_ready")
        poll_lines(a, 10, 80, 2, 12, 72)
        a.label("L_pp_ready")
        u_loads(a)
        a(f"s_mov_b32 s77, s{S_GROW}")
        vm.q = []
        a("s_waitcnt vmcnt(18)")
        gate()
    stamp(a, 2)


def gen_conv(a, cfg):
    a.label("L_conv")
    if cfg.get("prio", 0) & 1:
        a("s_setprio 0")
    ACC, AP = 0, 160
    AF, BF = [32, 96], [64, 128]
    VA, VB, VY = 164, 165, 166
    a(f"""
    s_sub_u32 s71, s{S_WAVE}, 4
    s_lshl_b32 s72, s2, 2
    s_add_u32 s72, s72, s71
    s_mul_i32 s73, s71, {H_CH}
    s_lshl_b32 s74, s72, 12
    v_lshlrev_b32 v1, 4, v{LANE}
    v_lshrrev_b32 v2, 4, v{LANE}
    v_and_b32 v3, 15, v{LANE}
    v_add_u32 v4, v2, v3
    v_subrev_u32 v4, 15, v4
    v_add_u32 v5, s73, v1
    v_mov_b32 v10, 0
    v_mul_u32_u24 v14, {COPY}, v2
    v_lshlrev_b32 v15, 1, v3
    v_add_u32 v14, v14, v15
    v_add_u32 v14, s73, v14
    v_and_b32 v6, 3, v3
    v_mul_u32_u24 v6, {COPY}, v6
    v_lshlrev_b32 v7, 4, v2
    v_add_u32 v6, v6, v7
    v_lshrrev_b32 v7, 2, v3
    v_lshlrev_b32 v7, 3, v7
    v_add_u32 v6, v6, v7
    v_add_u32 v{VA}, s73, v6
    v_lshlrev_b32 v6, 1, v3
    v_add_u32 v6, 1, v6
    v_sub_u32 v6, v6, v2
    v_lshlrev_b32 v6, 4, v6
    s_mul_i32 s75, s71, {U_CH}
    s_add_u32 s75, s75, {L_U + 64}
    v_add_u32 v{VB}, s75, v6
    v_lshlrev_b32 v6, 5, v3
    v_lshlrev_b32 v7, 3, v2
    v_add_u32 v{VY}, v6, v7
    v_mov_b32 v9, {L_FLG}
    ds_read_b32 v11, v9 offset:{F_NONCE}
    s_waitcnt vmcnt(0)
    """)
    a("s_cmp_lt_u32 s71, 2\ns_cbranch_scc1 L_conv_nou")
    for c in range(2):
        for j in range(4):
            a(f"ds_write_b128 v{LANE-2}, {vr(16+16*c+4*j)} offset:{c*U_CH + 512 + j*1024}")
    a(f"""
    v_mov_b32 v12, 1
    s_waitcnt lgkmcnt(0)
    s_mov_b64 exec, 1
    ds_add_u32 v9, v12 offset:{F_U}
    s_mov_b64 exec, -1
    """)
    flag_off(4, S_MT, S_HP, 76, a)
    a("s_sub_u32 s77, s71, 2\ns_lshl_b32 s77, s77, 2")
    signal(a, 76, ("77", ), 12)
    a.label("L_conv_nou")
    TB = 76
    for j in range(4):
        d = [HD + 4 * j + m for m in range(4)] + [HE + 2 * j, HE + 2 * j + 1]
        for m in range(4):
            a(f"v_alignbit_b32 v{TB+m}, v{d[m+1]}, v{d[m]}, 16")
        for m in range(4):
            a(f"v_mov_b32 v{TB+4+m}, v{d[m+1]}")
        for m in range(4):
            a(f"v_alignbit_b32 v{TB+8+m}, v{d[m+2]}, v{d[m+1]}, 16")
        for m in range(2):
            a(f"v_mov_b32 v{TB+12+m}, v{d[m+2]}")
        for m in range(2):
            a(f"v_mov_b32 v{TB+14+m}, v{d[m+4]}")
        for c in range(4):
            a(f"ds_write_b128 v5, {vr(TB+4*c)} offset:{c*COPY + 32 + j*1024}")
        TB = 92 if TB == 76 else 76
    a(f"""
    v_cmp_gt_i32 vcc, 0, v4
    v_sub_u32 v16, 15, v3
    v_lshrrev_b32 v17, 3, v16
    v_cndmask_b32 v6, v{HFX}, v10, vcc
    v_and_b32 v18, 1, v16
    v_lshlrev_b32 v18, 4, v18
    v_lshlrev_b32 v8, v18, v{HDV}
    v_cmp_eq_u32 vcc, v17, v2
    ds_write_b16 v14, v6
    v_bfe_u32 v19, v16, 1, 2
    v_cndmask_b32 v8, v10, v8, vcc
    """)
    for m in range(4):
        a(f"v_cmp_eq_u32 vcc, {m}, v19")
        a("s_nop 1")
        a(f"v_cndmask_b32 v{AP+m}, v10, v8, vcc")
    a(f"s_waitcnt lgkmcnt(0)\nv_readfirstlane_b32 s{S_NONCE}, v11")
    lds_poll(a, 9, F_U, 2, 12, 76)
    srd(a, R_A, P_WO, 2 << 20)
    a(f"""
    v_lshrrev_b32 v4, 3, v{LANE}
    v_and_b32 v5, 7, v{LANE}
    v_bfe_u32 v6, v{LANE}, 4, 2
    v_lshlrev_b32 v6, 1, v6
    v_xor_b32 v5, v5, v6
    v_lshlrev_b32 v5, 4, v5
    v_lshlrev_b32 v4, 11, v4
    v_add_u32 v{WOV}, v4, v5
    s_mov_b32 s83, s72
    s_lshl_b32 s72, s{S_NT3}, 7
    s_lshl_b32 s73, s71, 15
    s_add_u32 s72, s72, s73
    s_lshl_b32 s73, s71, 11
    s_mov_b32 s82, s74
    """)
    lds_poll(a, 9, F_G1, 4, 12, 76)
    if not cfg.get("weave_dma", 0):
        for j in range(8):
            for x in wo_dma(a, j, 0) + wo_dma(a, j, 1):
                a(x)
    probe(a, cfg, 2)
    stamp(a, 3)

    def rd(rho, s):
        r = []
        for i in range(8):
            r.append(f"ds_read_b128 {vr(BF[s]+4*i)}, v{VB} offset:{512*i + 64*(7-rho)}")
            n = 8 * i + rho
            r.append(f"ds_read_b64 {vr(AF[s]+4*i,2)}, v{VA} offset:{64*n}")
            r.append(f"ds_read_b64 {vr(AF[s]+4*i+2,2)}, v{VA} offset:{64*n+8}")
        return r

    def mm(rho, s):
        m = []
        for T in range(8):
            for i in range(T + 1):
                c = "0" if (rho == 0 and i == 0) else vr(ACC + 4 * T)
                m.append(mfma(ACC + 4 * T, AF[s] + 4 * i, BF[s] + 4 * (T - i), c))
            if rho == 0:
                m.append(mfma(ACC + 4 * T, AP, BF[s] + 4 * T, vr(ACC + 4 * T)))
        return m

    for x in rd(0, 0):
        a(x)
    for rho in range(8):
        s = rho & 1
        a("s_waitcnt lgkmcnt(0)")
        if rho == cfg.get("werho", 3):
            a(f"v_mov_b32 v168, 1\nv_mov_b32 v169, {L_FLG}\ns_waitcnt vmcnt(0)\ns_mov_b64 exec, 1\nds_add_u32 v169, v168 offset:{F_WE}\ns_mov_b64 exec, -1")
        nxt = rd(rho + 1, s ^ 1) if rho < 7 else []
        dma = (wo_dma(a, rho, 0) + wo_dma(a, rho, 1)) if cfg.get("weave_dma", 0) else []
        k = 0
        for n, x in enumerate(mm(rho, s)):
            a(x)
            if k < len(nxt):
                a(nxt[k]); k += 1
            elif dma:
                a(dma.pop(0))
        assert k == len(nxt) and not dma
    a("s_nop 7")
    probe(a, cfg, 9)
    stamp(a, 4)
    a(f"s_add_u32 s75, s82, {WS_YT:#x}")
    for T in range(8):
        a(f"v_cvt_pk_bf16_f32 v{32+2*T}, v{ACC+4*T}, v{ACC+4*T+1}")
        a(f"v_cvt_pk_bf16_f32 v{33+2*T}, v{ACC+4*T+2}, v{ACC+4*T+3}")
    for T in range(8):
        a(f"buffer_store_dwordx2 {vr(32+2*T,2)}, v{VY}, {sr(R_WS)}, s75 offen offset:{512*T} sc1 {'nt' if cfg.get('ntyt', 0) else ''}")
    a(f"""
    v_mov_b32 v2, {L_FLG}
    v_mov_b32 v3, 1
    s_mov_b64 exec, 1
    ds_add_u32 v2, v3 offset:{F_CONV}
    s_mov_b64 exec, -1
    s_lshr_b32 s76, s2, 4
    s_and_b32 s77, s2, 15
    """)
    flag_off(3, 76, 77, 80, a)
    a("s_lshl_b32 s81, s71, 2")
    signal(a, 80, ("81", ), 4, drain=True)
    lds_poll(a, 2, F_CONV, 4, 4, 76)
    stamp(a, 5)
    for j in range(8, 16):
        for x in wo_dma(a, j, 0) + wo_dma(a, j, 1):
            a(x)
    stamp(a, 6)
    a(f"""
    s_waitcnt vmcnt(0)
    v_mov_b32 v3, 1
    s_mov_b64 exec, 1
    ds_add_u32 v2, v3 offset:{F_W2}
    s_mov_b64 exec, -1
    """)
    stamp(a, 7)
    a("s_cmp_ge_u32 s71, 2\ns_cbranch_scc1 L_yload")
    stamp_flush(a)
    a("s_endpgm")

    a.label("L_yload")
    probe(a, cfg, 8)
    a(f"""
    v_lshrrev_b32 v8, 2, v{LANE}
    v_lshlrev_b32 v8, 8, v8
    v_and_b32 v9, 3, v{LANE}
    v_lshlrev_b32 v9, 2, v9
    v_add_u32 v8, v8, v9
    s_lshl_b32 s80, s{S_NT3}, 12
    s_add_u32 s80, s80, {WS_FL + 3*65536:#x}
    """)
    poll_lines(a, 8, 80, 4, 10, 72)
    a(f"""
    s_sub_u32 s71, s71, 2
    v_lshrrev_b32 v4, 4, v{LANE}
    v_and_b32 v5, 15, v{LANE}
    v_lshlrev_b32 v6, 12, v4
    v_lshlrev_b32 v5, 4, v5
    v_add_u32 v6, v6, v5
    v_lshlrev_b32 v7, 8, v4
    v_add_u32 v7, v7, v5
    s_lshl_b32 s72, s{S_NT3}, 18
    s_lshl_b32 s73, s{S_MT3}, 8
    s_add_u32 s72, s72, s73
    s_lshl_b32 s73, s71, 17
    s_add_u32 s72, s72, s73
    s_add_u32 s72, s72, {WS_YT:#x}
    s_lshl_b32 s73, s71, 13
    s_add_u32 s73, s73, {L_Y}
    v_add_u32 v7, s73, v7
    """)
    for i in range(8):
        a(f"s_add_u32 s74, s72, {i*16384}")
        a(f"buffer_load_dwordx4 {vr(16+4*i)}, v6, {sr(R_WS)}, s74 offen sc1")
    a("s_waitcnt vmcnt(0)")
    for i in range(8):
        a(f"ds_write_b128 v7, {vr(16+4*i)} offset:{i*1024}")
    a("s_waitcnt lgkmcnt(0)")
    a(f"""
    v_mov_b32 v3, 1
    v_mov_b32 v2, {L_FLG}
    s_mov_b64 exec, 1
    ds_add_u32 v2, v3 offset:{F_Y}
    s_mov_b64 exec, -1
    """)
    stamp(a, 6)
    stamp_flush(a)
    a("s_endpgm")


def gen_compute(a, cfg):
    a.label("L_compute")
    Q = lambda dt, rt: 0 + 4 * (4 * dt + rt)
    K = lambda rt, dt: 32 + 4 * (2 * rt + dt)
    V = lambda rt, et: 64 + 4 * (2 * rt + et)
    FS = [96, 136]
    AB, AC = 176, 180
    BAR_AT = cfg.get("barat", 5)
    W1 = {0: [0, 8, 16], 1: [0], 2: [0, 8], 3: None}[cfg.get("w1", 0)]
    a(f"""
    s_and_b32 s71, s{S_WAVE}, 1
    s_lshr_b32 s72, s{S_WAVE}, 1
    v_and_b32 v1, 15, v{LANE}
    v_lshrrev_b32 v2, 4, v{LANE}
    v_lshrrev_b32 v3, 1, v1
    v_xor_b32 v3, v3, v2
    v_lshlrev_b32 v3, 4, v3
    s_lshl_b32 s73, s72, 13
    v_lshlrev_b32 v4, 7, v1
    v_add_u32 v4, s73, v4
    v_add_u32 v{AB}, v4, v3
    v_xor_b32 v{AB+1}, 64, v{AB}
    v_bfe_u32 v3, v{LANE}, 2, 2
    v_lshlrev_b32 v4, 3, v2
    v_add_u32 v4, v4, v3
    v_lshlrev_b32 v4, 7, v4
    v_lshrrev_b32 v3, 1, v3
    v_and_b32 v5, 1, v2
    v_lshlrev_b32 v5, 1, v5
    v_or_b32 v3, v3, v5
    v_lshlrev_b32 v3, 1, v3
    v_bfe_u32 v5, v{LANE}, 1, 1
    s_lshl_b32 s73, s71, 2
    v_or_b32 v5, s73, v5
    v_xor_b32 v3, v3, v5
    v_lshlrev_b32 v3, 4, v3
    v_add_u32 v4, v4, v3
    v_and_b32 v3, 1, v{LANE}
    v_lshlrev_b32 v3, 3, v3
    v_add_u32 v4, v4, v3
    v_add_u32 v{AB+2}, 16384, v4
    v_xor_b32 v{AB+3}, 32, v{AB+2}
    s_mov_b32 s74, {(NS-1)*SLOT}
    """)
    if cfg.get("cpf", 1):
        a(f"""
        s_getpc_b64 s[4:5]
        L_pc:
        s_sub_u32 s4, s4, L_pc-{KNAME}
        s_subb_u32 s5, s5, 0
        s_lshl_b32 s6, s{S_WAVE}, 13
        v_lshlrev_b32 v6, 6, v{LANE}
        v_add_u32 v6, s6, v6
        v_min_u32 v7, L_end-{KNAME}, v6
        global_load_dword v240, v7, s[4:5]
        v_add_u32 v6, 4096, v6
        v_min_u32 v7, L_end-{KNAME}, v6
        global_load_dword v241, v7, s[4:5]
        """)
    AS = 192
    for sl in range(NS):
        for i in range(4):
            a(f"v_add_u32 v{AS+4*sl+i}, {sl*SLOT}, v{AB+i}")
    for r in range(96):
        a(f"v_mov_b32 v{r}, 0")

    def reads(kk, fs, stage=0):
        X = lambda rt: fs + 4 * rt
        W = lambda seg, ct: fs + 16 + 8 * seg + 4 * ct
        ac = AS + 4 * ((stage + NS - 1) % NS)
        r = []
        for seg in range(3):
            for ct in range(2):
                for t in range(2):
                    r.append((f"ds_read_b64_tr_b16 {vr(W(seg,ct)+2*t,2)}, v{ac+2+ct} offset:{seg*8192+kk*4096+t*512}", ("w", seg, ct, t)))
            if seg == 0:
                for rt in range(4):
                    r.append((f"ds_read_b128 {vr(X(rt))}, v{ac+kk} offset:{rt*2048}", ("x", rt)))
        return r

    def mfmas(fs):
        X = lambda rt: fs + 4 * rt
        W = lambda seg, ct: fs + 16 + 8 * seg + 4 * ct
        m = []
        for rt in range(4):
            for dt in range(2):
                m.append((mfma(Q(dt, rt), W(0, dt), X(rt), vr(Q(dt, rt))), [("x", rt), ("w", 0, dt, 1)]))
        for rt in range(4):
            for dt in range(2):
                m.append((mfma(K(rt, dt), X(rt), W(1, dt), vr(K(rt, dt))), [("x", rt), ("w", 1, dt, 1)]))
        for rt in range(4):
            for et in range(2):
                m.append((mfma(V(rt, et), X(rt), W(2, et), vr(V(rt, et))), [("x", rt), ("w", 2, et, 1)]))
        return m

    if cfg.get("prio", 0) & 2:
        a("s_setprio 1")
    a(f"v_mov_b32 v251, {L_FLG}\nv_mov_b32 v252, 1")
    stamp(a, 1)
    if cfg.get("prebar", 0):
        a("s_barrier")
    a("s_barrier")
    stamp(a, 2)
    for r, _ in reads(0, FS[0]):
        a(r)
    a("s_mov_b32 s75, 0")
    a.label("L_gemm1")
    tags = [t for _, t in reads(0, FS[0])]
    for u in range(4):
        weave(a, mfmas(FS[0]), tags, reads(1, FS[1], u), waits=W1, skip=(7, 15))
        if u < 3:
            hook = "s_waitcnt lgkmcnt(0)\ns_barrier"
        else:
            hook = ("s_waitcnt lgkmcnt(0)\ns_cmp_eq_u32 s75, 3\ns_cbranch_scc1 L_g1_last\ns_barrier\ns_branch L_g1_nobar\nL_g1_last:\ns_mov_b64 exec, 1\n"
                    + f"ds_add_u32 v251, v252 offset:{F_G1}\n" + "s_mov_b64 exec, -1\nL_g1_nobar:")
        weave(a, mfmas(FS[1]), tags, reads(0, FS[0], u + 1), start=BAR_AT + 1, hooks={BAR_AT: hook}, waits=W1, skip=(7, 15))
    a("s_add_u32 s75, s75, 1\ns_cmp_lt_u32 s75, 4\ns_cbranch_scc1 L_gemm1")
    stamp(a, 3)

    probe(a, cfg, 1)
    if cfg.get("probe", 0) == 5:
        a(f"s_and_b32 s76, s{S_HP}, 3\ns_cmp_eq_u32 s76, 3\ns_cbranch_scc1 L_pr5")
        a("s_sleep 16\ns_sleep 16")
        a.label("L_pr5")
    if cfg.get("probe", 0) == 6:
        a(f"s_and_b32 s76, s{S_HP}, 3\ns_cmp_eq_u32 s76, 3\ns_cbranch_scc0 L_pr6")
        a("s_sleep 16\ns_sleep 16")
        a.label("L_pr6")
    if cfg.get("eprio", 1):
        a(f"s_setprio {cfg.get('eprio', 1)}")
    TMP = 96
    PK = lambda p, dt: 128 + 4 * (2 * p + dt)
    PV = lambda p, et: 144 + 4 * (2 * p + et)
    ONES = 160
    KV = lambda dt, et: 164 + 4 * (2 * dt + et)
    ZZ = lambda dt: 180 + 4 * dt
    VL = 224
    VF = 230
    S_L2E, S_EPS = 8, 10
    a(f"""
    s_mov_b32 s{S_L2E}, {LOG2E:#x}
    s_mov_b32 s{S_L2E+1}, {LOG2E:#x}
    s_mov_b32 s{S_EPS}, {EPS6:#x}
    s_mov_b32 s{S_EPS+1}, {EPS6:#x}
    s_mov_b32 s{S_EPS+2}, 1.0
    s_mov_b32 s{S_EPS+3}, 1.0
    v_lshlrev_b32 v{VL}, 4, v{LANE}
    v_mov_b32 v{VF}, {L_FLG}
    v_mov_b32 v{ONES}, 0x3f803f80
    v_mov_b32 v{ONES+1}, 0x3f803f80
    v_mov_b32 v{ONES+2}, 0x3f803f80
    v_mov_b32 v{ONES+3}, 0x3f803f80
    s_waitcnt lgkmcnt(0)
    ds_read_b32 v{VF+1}, v{VF} offset:{F_NONCE}
    s_nop 3
    """)
    phi(a, [K(rt, dt) + e for rt in range(4) for dt in range(2) for e in range(4)], TMP, S_L2E, S_EPS, packed=bool(cfg.get('pkk', 1)))
    for p in range(2):
        for dt in range(2):
            for hlf in range(2):
                src = K(2 * p + hlf, dt)
                a(f"v_cvt_pk_bf16_f32 v{PK(p,dt)+2*hlf}, v{src}, v{src+1}")
                a(f"v_cvt_pk_bf16_f32 v{PK(p,dt)+2*hlf+1}, v{src+2}, v{src+3}")
        for et in range(2):
            for hlf in range(2):
                src = V(2 * p + hlf, et)
                a(f"v_cvt_pk_bf16_f32 v{PV(p,et)+2*hlf}, v{src}, v{src+1}")
                a(f"v_cvt_pk_bf16_f32 v{PV(p,et)+2*hlf+1}, v{src+2}, v{src+3}")
    a(f"s_waitcnt lgkmcnt(0)\nv_readfirstlane_b32 s{S_NONCE}, v{VF+1}")
    for p in range(2):
        for dt in range(2):
            for et in range(2):
                a(mfma(KV(dt, et), PK(p, dt), PV(p, et), "0" if p == 0 else vr(KV(dt, et))))
            a(mfma(ZZ(dt), PK(p, dt), ONES, "0" if p == 0 else vr(ZZ(dt))))
    a(f"""
    s_lshl_b32 s78, s71, 12
    s_add_u32 s78, s78, {L_KVX}
    v_add_u32 v{VL+2}, s78, v{VL}
    v_lshrrev_b32 v{VL+3}, 4, v{LANE}
    v_lshlrev_b32 v{VL+3}, 4, v{VL+3}
    s_lshl_b32 s78, s71, 7
    s_add_u32 s78, s78, {L_ZX}
    v_add_u32 v{VL+4}, s78, v{VL+3}
    s_lshl_b32 s79, s71, 2
    v_add_u32 v{VL+5}, s79, v{VF}
    s_lshl_b32 s80, s{S_HP}, 1
    s_add_u32 s80, s80, s71
    s_cmp_eq_u32 s72, 0
    s_cbranch_scc1 L_kvlower
    """)
    for t in range(4):
        a(f"ds_write_b128 v{VL+2}, {vr(KV(t>>1,t&1))} offset:{t*1024}")
    for dt in range(2):
        a(f"ds_write_b128 v{VL+4}, {vr(ZZ(dt))} offset:{dt*64}")
    a(f"""
    v_mov_b32 v{TMP}, 1
    s_waitcnt lgkmcnt(0)
    ds_write_b32 v{VL+5}, v{TMP} offset:{F_KVX}
    s_branch L_kvdone
    """)
    a.label("L_kvlower")
    lds_poll(a, VL + 5, F_KVX, 1, TMP, 82)
    for t in range(4):
        a(f"ds_read_b128 {vr(TMP+4*t)}, v{VL+2} offset:{t*1024}")
    for dt in range(2):
        a(f"ds_read_b128 {vr(TMP+16+4*dt)}, v{VL+4} offset:{dt*64}")
    a(f"""
    s_lshl_b32 s81, s{S_MT}, 5
    s_add_u32 s81, s81, s80
    s_lshl_b32 s82, s81, 11
    s_add_u32 s82, s82, {WS_KVP:#x}
    s_lshl_b32 s83, s81, 7
    s_add_u32 s83, s83, {WS_ZP:#x}
    s_waitcnt lgkmcnt(0)
    """)
    for t in range(4):
        for e in range(4):
            a(f"v_add_f32 v{KV(t>>1,t&1)+e}, v{KV(t>>1,t&1)+e}, v{TMP+4*t+e}")
    for dt in range(2):
        for e in range(4):
            a(f"v_add_f32 v{ZZ(dt)+e}, v{ZZ(dt)+e}, v{TMP+16+4*dt+e}")
    for et in range(2):
        for dt in range(2):
            a(f"v_cvt_pk_bf16_f32 v{TMP+4*et+2*dt}, v{KV(dt,et)}, v{KV(dt,et)+1}")
            a(f"v_cvt_pk_bf16_f32 v{TMP+4*et+2*dt+1}, v{KV(dt,et)+2}, v{KV(dt,et)+3}")
        a(f"buffer_store_dwordx4 {vr(TMP+4*et)}, v{VL}, {sr(R_WS)}, s82 offen offset:{et*1024} sc1")
    a(f"""
    v_and_b32 v{TMP+24}, 15, v{LANE}
    v_cmp_eq_u32 vcc, 0, v{TMP+24}
    s_and_saveexec_b64 s[78:79], vcc
    """)
    for dt in range(2):
        a(f"buffer_store_dwordx4 {vr(ZZ(dt))}, v{VL+3}, {sr(R_WS)}, s83 offen offset:{dt*64} sc1")
    a("s_mov_b64 exec, s[78:79]")
    a.label("L_kvdone")

    PQ = lambda rt: 32 + 4 * rt
    nfirst = cfg.get("qsplit", 1)
    for dt in range(nfirst):
        phi(a, [Q(dt, rt) + e for rt in range(4) for e in range(4)], TMP + 16, S_L2E, S_EPS, packed=False)
    a("s_cmp_eq_u32 s72, 0\ns_cbranch_scc0 L_kvsig_done")
    flag_off(1, S_HP, S_MT, 82, a)
    a("s_lshl_b32 s83, s71, 2")
    signal(a, 82, ("83", ), TMP, drain=True)
    a.label("L_kvsig_done")
    stamp(a, 4)
    for dt in range(nfirst, 2):
        phi(a, [Q(dt, rt) + e for rt in range(4) for e in range(4)], TMP + 16, S_L2E, S_EPS, packed=False)
    for rt in range(4):
        for dt in range(2):
            a(f"v_cvt_pk_bf16_f32 v{PQ(rt)+2*dt}, v{Q(dt,rt)}, v{Q(dt,rt)+1}")
            a(f"v_cvt_pk_bf16_f32 v{PQ(rt)+2*dt+1}, v{Q(dt,rt)+2}, v{Q(dt,rt)+3}")
    VP = 232
    PART = 96
    SUM = 160
    SEL = 168
    VZ, VX0, VX1, VF0, VF1 = 73, 74, 75, 76, 77
    srd(a, R_A, P_X, 4 << 20)
    srd(a, R_B, P_OUT, 4 << 20)
    a(f"""
    v_lshrrev_b32 v{VP}, 2, v{LANE}
    v_lshlrev_b32 v{VP}, 8, v{VP}
    v_and_b32 v{VP+1}, 3, v{LANE}
    v_lshlrev_b32 v{VP+1}, 2, v{VP+1}
    v_add_u32 v{VP}, v{VP}, v{VP+1}
    s_lshl_b32 s78, s{S_HQ}, 1
    s_add_u32 s78, s78, s71
    s_lshl_b32 s79, s78, 11
    s_lshl_b32 s80, s72, 10
    s_add_u32 s79, s79, s80
    s_add_u32 s79, s79, {WS_KVP:#x}
    v_and_b32 v{VZ}, 15, v{LANE}
    v_lshlrev_b32 v{VZ}, 12, v{VZ}
    v_lshrrev_b32 v49, 4, v{LANE}
    v_lshlrev_b32 v49, 4, v49
    v_add_u32 v{VZ}, v{VZ}, v49
    s_lshl_b32 s15, s78, 7
    s_add_u32 s15, s15, {WS_ZP:#x}
    """)
    for p in range(16):
        a(f"s_add_u32 s81, s{S_MT}, {p}\ns_and_b32 s81, s81, 15\ns_lshl_b32 s81, s81, 16\ns_add_u32 s{16+p}, s81, s79")
    a(f"""
    v_and_b32 v50, 15, v{LANE}
    v_lshrrev_b32 v51, 2, v50
    v_lshrrev_b32 v60, 4, v{LANE}
    v_and_b32 v61, 1, v50
    v_lshlrev_b32 v61, 4, v61
    v_mov_b32 v62, 0x3f80
    v_lshlrev_b32 v62, v61, v62
    v_cmp_eq_u32 vcc, v51, v60
    v_bfe_u32 v61, v50, 1, 1
    v_mov_b32 v63, 0
    v_cndmask_b32 v62, v63, v62, vcc
    v_cmp_eq_u32 vcc, 0, v61
    v_mov_b32 v{SEL+2}, 0
    v_mov_b32 v{SEL+3}, 0
    v_cndmask_b32 v{SEL}, v63, v62, vcc
    v_cndmask_b32 v{SEL+1}, v62, v63, vcc
    v_mov_b32 v{SEL+4}, 0
    v_mov_b32 v{SEL+5}, 0
    v_mov_b32 v{SEL+6}, v{SEL}
    v_mov_b32 v{SEL+7}, v{SEL+1}
    s_lshl_b32 s78, s71, 11
    s_lshl_b32 s79, s72, 10
    s_add_u32 s78, s78, {L_OX}
    s_add_u32 s80, s78, s79
    s_xor_b32 s79, s79, 1024
    s_add_u32 s81, s78, s79
    v_add_u32 v{VX0}, s80, v{VL}
    v_add_u32 v{VX1}, s81, v{VL}
    s_lshl_b32 s78, s{S_WAVE}, 2
    s_xor_b32 s79, s78, 8
    v_add_u32 v{VF0}, s78, v{VF}
    v_add_u32 v{VF1}, s79, v{VF}
    v_mov_b32 v72, 1
    s_lshl_b32 s14, s{S_MT}, 3
    s_lshl_b32 s79, s72, 2
    s_add_u32 s14, s14, s79
    s_lshl_b32 s14, s14, 5
    s_lshl_b32 s79, s{S_HQ}, 1
    s_add_u32 s14, s14, s79
    s_add_u32 s14, s14, s71
    s_lshl_b32 s14, s14, 10
    s_add_u32 s14, s14, {WS_O:#x}
    """)
    flag_off(2, S_MT, S_HQ, 60, a)
    a(f"s_lshl_b32 s61, s{S_WAVE}, 2")
    a(f"""
    s_lshl_b32 s78, s{S_HQ}, 12
    s_add_u32 s78, s78, {WS_FL + 65536:#x}
    """)
    a(f"s_cmp_eq_u32 s{S_WAVE}, 2\ns_cbranch_scc0 L_s2_lds")
    poll_lines(a, VP, 78, 2, VP + 2, 80)
    a(f"ds_write_b32 v{VF}, v72 offset:{F_S2}\ns_branch L_s2_done")
    a.label("L_s2_lds")
    lds_poll(a, VF, F_S2, 1, VP + 2, 80)
    a.label("L_s2_done")
    stamp(a, 5)
    a(f"buffer_load_dwordx4 v[52:55], v{VZ}, {sr(R_WS)}, s15 offen sc1")
    a(f"buffer_load_dwordx4 v[56:59], v{VZ}, {sr(R_WS)}, s15 offen offset:64 sc1")
    for p in range(16):
        a(f"buffer_load_dwordx4 {vr(PART+4*p)}, v{VL}, {sr(R_WS)}, s{16+p} offen sc1")
    a("s_waitcnt vmcnt(16)")
    for ctl in ("row_ror:8", "row_ror:4", "row_ror:2", "row_ror:1"):
        for e in range(8):
            a(f"v_add_f32_dpp v{52+e}, v{52+e}, v{52+e} {ctl} row_mask:0xf bank_mask:0xf")
    ZF = 60
    for i in range(4):
        a(f"v_cvt_pk_bf16_f32 v{ZF+i}, v{52+2*i}, v{52+2*i+1}")
    for p in range(16):
        if p % 2 == 0:
            a(f"s_waitcnt vmcnt({14-p})")
        a(mfma(SUM, SEL, PART + 4 * p, "0" if p == 0 else vr(SUM)))
        a(mfma(SUM + 4, SEL + 4, PART + 4 * p, "0" if p == 0 else vr(SUM + 4)))
    stamp(a, 11)
    a("s_nop 7")
    KF = [64, 68]
    for i in range(4):
        a(f"v_cvt_pk_bf16_f32 v{64+i}, v{SUM+2*i}, v{SUM+2*i+1}")
    a(f"""
    ds_write_b128 v{VX0}, v[64:67]
    s_waitcnt lgkmcnt(0)
    ds_write_b32 v{VF0}, v72 offset:{F_OX}
    """)
    lds_poll(a, VF1, F_OX, 1, 48, 82)
    a(f"ds_read_b128 v[68:71], v{VX1}\ns_waitcnt lgkmcnt(0)")
    stamp(a, 12)
    a(f"""
    s_cmp_eq_u32 s72, 0
    s_cbranch_scc1 L_noswap
    v_swap_b32 v64, v68
    v_swap_b32 v65, v69
    v_swap_b32 v66, v70
    v_swap_b32 v67, v71
    """)
    a.label("L_noswap")
    NUM = lambda et, rt: 96 + 4 * (4 * et + rt)
    DEN = lambda rt: 128 + 4 * rt
    a("s_nop 1")
    for rt in range(4):
        a(mfma(DEN(rt), ZF, PQ(rt), "0"))
    for rt in range(4):
        for et in range(2):
            a(mfma(NUM(et, rt), KF[et], PQ(rt), "0"))
    for rt in range(4):
        a(f"v_add_f32 v{DEN(rt)}, s{S_EPS}, v{DEN(rt)}")
    for rt in range(4):
        a(f"v_rcp_f32 v{DEN(rt)}, v{DEN(rt)}")
    OF = lambda rt: 144 + 4 * rt
    for rt in range(4):
        for et in range(2):
            for e in range(4):
                a(f"v_mul_f32 v{NUM(et,rt)+e}, v{NUM(et,rt)+e}, v{DEN(rt)}")
        for et in range(2):
            a(f"v_cvt_pk_bf16_f32 v{OF(rt)+2*et}, v{NUM(et,rt)}, v{NUM(et,rt)+1}")
            a(f"v_cvt_pk_bf16_f32 v{OF(rt)+2*et+1}, v{NUM(et,rt)+2}, v{NUM(et,rt)+3}")
        a(f"s_add_u32 s79, s14, {rt*32768}")
        a(f"buffer_store_dwordx4 {vr(OF(rt))}, v{VL}, {sr(R_WS)}, s79 offen sc1")
    stamp(a, 13)
    signal(a, 60, ("61", ), TMP, drain=True)
    stamp(a, 6)

    vm = VM(a)
    ACC = lambda nt, st: 4 * (2 * nt + st)
    OR = 32
    PD = cfg.get("pd", 4)
    WF = [96, 112]
    XR = 128
    GR = 144
    WA = 148
    VX = 192
    XG = 160
    a(f"""
    v_and_b32 v1, 15, v{LANE}
    v_lshrrev_b32 v2, 4, v{LANE}
    s_lshl_b32 s73, s{S_MT3}, 7
    s_lshl_b32 s74, s{S_WAVE}, 5
    s_add_u32 s73, s73, s74
    v_add_u32 v3, s73, v1
    v_lshlrev_b32 v4, 11, v3
    v_lshlrev_b32 v5, 4, v2
    v_add_u32 v4, v4, v5
    s_lshl_b32 s74, s{S_NT3}, 7
    v_add_u32 v{VX}, s74, v4
    v_add_u32 v{VX+1}, 0x8000, v{VX}
    v_lshlrev_b32 v3, 2, v3
    s_mov_b32 s75, {WS_G:#x}
    """)
    for st in range(2):
        for ntp in range(2):
            a(f"buffer_load_dwordx4 {vr(XR+8*st+4*ntp)}, v{VX+st}, {sr(R_A)}, 0 offen offset:{64*ntp}")
    a(f"""
    s_lshl_b32 s76, s{S_MT3}, 12
    s_add_u32 s76, s76, {WS_FL + 4*65536:#x}
    """)
    poll_lines(a, VP, 76, 2, VP + 2, 80)
    a(f"buffer_load_dword v{GR}, v3, {sr(R_WS)}, s75 offen sc1")
    a(f"buffer_load_dword v{GR+1}, v3, {sr(R_WS)}, s75 offen offset:64 sc1")
    a(f"""
    v_bfe_u32 v3, v{LANE}, 2, 2
    v_lshlrev_b32 v4, 2, v2
    v_add_u32 v4, v4, v3
    v_lshlrev_b32 v5, 7, v4
    v_lshrrev_b32 v4, 1, v4
    v_and_b32 v4, 3, v4
    v_lshlrev_b32 v4, 1, v4
    v_bfe_u32 v6, v{LANE}, 1, 1
    v_and_b32 v7, 1, v{LANE}
    v_lshlrev_b32 v7, 3, v7
    v_add_u32 v5, v5, v7
    """)
    for nt in range(4):
        a(f"v_or_b32 v7, {2*nt}, v6")
        a("v_xor_b32 v7, v7, v4")
        a("v_lshlrev_b32 v7, 4, v7")
        a(f"v_add_u32 v{WA+nt}, v5, v7")
    pair_order(a)
    a(f"""
    s_lshl_b32 s78, s{S_MT3}, 12
    s_add_u32 s78, s78, {WS_FL + 2*65536:#x}
    """)
    GM = [16, 18, 20, 22]
    for g in range(4):
        a(f"s_mov_b64 s[{GM[g]}:{GM[g]+1}], 0")
        for j in range(4 * g, 4 * g + 4):
            a(f"s_lshr_b32 s76, s{SP[j]}, 9\ns_lshl_b64 s[80:81], 15, s76\ns_or_b64 s[{GM[g]}:{GM[g]+1}], s[{GM[g]}:{GM[g]+1}], s[80:81]")
    probe(a, cfg, 3)
    PV = [VP + 2, VP + 3, VP + 4]
    poll_mask(a, VP, 78, GM[0], PV[0], 82)
    stamp(a, 7)
    a(f"""
    s_lshl_b32 s73, s{S_MT3}, 3
    s_lshl_b32 s74, s{S_WAVE}, 1
    s_add_u32 s73, s73, s74
    s_lshl_b32 s73, s73, 15
    s_add_u32 s73, s73, {WS_O:#x}
    s_add_u32 s74, s73, 32768
    """)

    for nt in range(4):
        a(f"v_add_u32 v{WA+4+nt}, {L_WE}, v{WA+nt}")
    VO = 194
    a(f"v_add_u32 v{VO+1}, 32768, v{VL}\nv_mov_b32 v{VO}, v{VL}")
    SO = [60, 61]

    def oload(i):
        j = i >> 1
        if (i & 1) == 0:
            a(f"s_add_u32 s{SO[j & 1]}, s73, s{SP[j]}")
        for st in range(2):
            a(f"buffer_load_dwordx4 {vr(OR+8*(i%PD)+4*st)}, v{VO+st}, {sr(R_WS)}, s{SO[j & 1]} offen offset:{(i&1)*1024} {'' if cfg.get('oplain', 0) else 'sc1'}")
            vm.issue(("o", i))

    def wreads(i, s):
        j = i >> 1
        base, off = (WA + 4, j * 8192) if j < 8 else (WA, (j - 8) * 8192)
        r = []
        for nt in range(4):
            for t in range(2):
                r.append(f"ds_read_b64_tr_b16 {vr(WF[s]+4*nt+2*t,2)}, v{base+nt} offset:{off+(i&1)*4096+t*2048}")
        return r

    VQ = 196
    a(f"v_and_b32 v{VQ}, 15, v{LANE}\nv_lshlrev_b32 v{VQ}, 7, v{VQ}\nv_lshrrev_b32 v{VQ+4}, 4, v{LANE}")

    def oprefetch(g):
        if not cfg.get("opf", 0):
            return
        a(f"v_mov_b32 v{VQ+1}, s{SP[4*g]}")
        for q in range(1, 4):
            a(f"v_cmp_eq_u32 vcc, {q}, v{VQ+4}\nv_mov_b32 v{VQ+5}, s{SP[4*g+q]}\ns_nop 0\nv_cndmask_b32 v{VQ+1}, v{VQ+1}, v{VQ+5}, vcc")
        a(f"v_add_u32 v{VQ+1}, v{VQ+1}, v{VQ}")
        a(f"buffer_load_dword v{VQ+2}, v{VQ+1}, {sr(R_WS)}, s73 offen sc1")
        a(f"buffer_load_dword v{VQ+3}, v{VQ+1}, {sr(R_WS)}, s74 offen sc1")
        vm.issue(("pf", g), 2)

    NFAST = 2 * len(FAST_PAIRS)
    P2 = VP + 3
    oprefetch(0)
    for i in range(PD):
        oload(i)
    lds_poll(a, VF, F_WE, 4, VP + 5, 80)
    stamp(a, 8)
    for x in wreads(0, 0):
        a(x)
    for st in range(2):
        for ntp in range(2):
            b = XR + 8 * st + 4 * ntp
            a(f"v_permlane16_swap_b32 v{b}, v{b+2}")
            a(f"v_permlane16_swap_b32 v{b+1}, v{b+3}")
    a("s_nop 0")
    for st in range(2):
        for ntp in range(2):
            b = XR + 8 * st + 4 * ntp
            a(f"v_permlane32_swap_b32 v{b}, v{b+2}")
            a(f"v_permlane32_swap_b32 v{b+1}, v{b+3}")
    for st in range(2):
        a(f"v_sub_f32 v{GR+2+st}, 1.0, v{GR+st}")
    for st in range(2):
        for nt in range(4):
            ntp, odd = nt >> 1, nt & 1
            xr = XR + 8 * st + 4 * ntp + 2 * odd
            d = XG + 4 * (4 * st + nt)
            unpack(a, d, xr, 0); unpack(a, d + 1, xr, 1); unpack(a, d + 2, xr + 1, 0); unpack(a, d + 3, xr + 1, 1)
            for e in range(4):
                a(f"v_mul_f32 v{d+e}, v{d+e}, v{GR+2+st}")
    smask = sum(0xf << (4 * p) for p in SLOW_PAIRS)
    for i in range(32):
        s = i & 1
        if i in (0, 8):
            a(f"buffer_load_dword v{PV[1 + i // 8]}, v{VP}, {sr(R_WS)}, s78 offen sc1")
            vm.issue(("p", i))
        for g in (1, 2, 3):
            if i == 8 * g - PD:
                if g == 1:
                    have = PV[0]
                else:
                    vm.wait(("p", 8 * (g - 2)))
                    have = PV[g - 1]
                poll_mask(a, VP, 78, GM[g], PV[0], 82, v_have=have)
                oprefetch(g)
        if cfg.get("ctl", 0) and i in (8, 16, 24):
            stamp(a, 11 + i // 8 - 1)
        vm.wait(("o", i))
        if i == 15:
            lds_poll(a, VF, F_W2, 4, VP + 5, 80)
        nxt = [(x, None) for x in wreads(i + 1, s ^ 1)] if i < 31 else []
        tags = [(nt, t) for nt in range(4) for t in range(2)]
        mf = []
        for nt in range(4):
            for st in range(2):
                c = "0" if i == 0 else vr(ACC(nt, st))
                mf.append((mfma(ACC(nt, st), WF[s] + 4 * nt, OR + 8 * (i % PD) + 4 * st, c), [(nt, 1)]))
        if cfg.get("cnomfma", 0):
            mf = [("s_nop 0", n) for _, n in mf]
        weave(a, mf, tags, nxt, waits={0: [0, 4], 1: [0, 2, 4, 6], 2: [0]}[cfg.get('cw', 0)])
        if i + PD < 32:
            oload(i + PD)
    stamp(a, 9)
    YR = 32
    lds_poll(a, VF, F_Y, 2, 64, 80)
    a(f"""
    v_bfe_u32 v64, v{LANE}, 2, 2
    v_lshrrev_b32 v65, 4, v{LANE}
    v_lshlrev_b32 v65, 2, v65
    v_add_u32 v64, v64, v65
    v_lshlrev_b32 v64, 8, v64
    v_and_b32 v65, 3, v{LANE}
    v_lshlrev_b32 v65, 3, v65
    v_add_u32 v64, v64, v65
    s_lshl_b32 s73, s{S_WAVE}, 6
    s_add_u32 s73, s73, {L_Y}
    v_add_u32 v64, s73, v64
    """)
    for nt in range(4):
        for st in range(2):
            a(f"ds_read_b64_tr_b16 {vr(YR+4*nt+2*st,2)}, v64 offset:{nt*4096+st*32}")
    a("s_waitcnt lgkmcnt(0)")
    T = 66
    OUT = 80
    for st in range(2):
        for nt in range(4):
            ntp, odd = nt >> 1, nt & 1
            yr = YR + 4 * nt + 2 * st
            ac = ACC(nt, st)
            xg = XG + 4 * (4 * st + nt)
            unpack(a, T, yr, 0); unpack(a, T + 1, yr, 1); unpack(a, T + 2, yr + 1, 0); unpack(a, T + 3, yr + 1, 1)
            for e in range(4):
                a(f"v_mul_f32 v{T+e}, v{T+e}, v{xg+e}")
            for e in range(4):
                a(f"v_fmac_f32 v{T+e}, v{ac+e}, v{GR+st}")
            o = OUT + 8 * st + 4 * ntp + 2 * odd
            a(f"v_cvt_pk_bf16_f32 v{o}, v{T}, v{T+1}")
            a(f"v_cvt_pk_bf16_f32 v{o+1}, v{T+2}, v{T+3}")
            T = 72 if T == 66 else 66
    a("s_nop 1")
    for st in range(2):
        for ntp in range(2):
            b = OUT + 8 * st + 4 * ntp
            a(f"v_permlane32_swap_b32 v{b}, v{b+2}")
            a(f"v_permlane32_swap_b32 v{b+1}, v{b+3}")
    a("s_nop 0")
    for st in range(2):
        for ntp in range(2):
            b = OUT + 8 * st + 4 * ntp
            a(f"v_permlane16_swap_b32 v{b}, v{b+2}")
            a(f"v_permlane16_swap_b32 v{b+1}, v{b+3}")
    for st in range(2):
        for ntp in range(2):
            a(f"buffer_store_dwordx4 {vr(OUT+8*st+4*ntp)}, v{VX+st}, {sr(R_B)}, 0 offen offset:{64*ntp} {['', 'sc1', 'nt', 'sc0 sc1', 'sc1 nt'][cfg.get('outfl', 1)]}")
    stamp(a, 10)
    stamp_flush(a)
    a.label("L_end")
    a("s_endpgm")


HEADER = f"""; gated_mix: g * linear_attention(x) + (1 - g) * x * h3_conv(k, v) in one persistent launch.
; @launch grid=(256,1,1) block=(512,1,1) lds={LDS_BYTES}
.amdgcn_target "amdgcn-amd-amdhsa--gfx950"
.text
.globl {KNAME}
.p2align 8
.type {KNAME},@function
{KNAME}:
"""

DESC = f""".section .rodata,"a"
.p2align 6
.amdhsa_kernel {KNAME}
  .amdhsa_next_free_vgpr 256
  .amdhsa_next_free_sgpr 102
  .amdhsa_accum_offset 256
  .amdhsa_group_segment_fixed_size 0
  .amdhsa_kernarg_size 104
  .amdhsa_user_sgpr_count 2
  .amdhsa_user_sgpr_kernarg_segment_ptr 1
  .amdhsa_system_sgpr_workgroup_id_x 1
  .amdhsa_float_denorm_mode_32 3
.end_amdhsa_kernel
"""


def generate(cfg=None):
    global STAMPS
    cfg = cfg or {}
    STAMPS = cfg.get("stamps", 0)
    a = Asm()
    BARTL[0] = cfg.get("bartl", 0)
    NTH[0] = "nt" if cfg.get("nth", 0) else ""
    NTWO[0] = "nt" if cfg.get("ntwo", 0) else ""
    CUR_ROLE[0] = "pro"
    gen_prologue(a, cfg)
    CUR_ROLE[0] = "ld"
    gen_loader(a, cfg)
    CUR_ROLE[0] = "pp"
    gen_prepass(a, cfg)
    CUR_ROLE[0] = "ld" if BARTL[0] else "conv"
    gen_conv(a, cfg)
    CUR_ROLE[0] = "comp"
    gen_compute(a, cfg)
    return HEADER + a.text() + DESC


if __name__ == "__main__":
    cfg = {}
    out = f"cdna_kernels/{NAME}.s"
    for arg in sys.argv[1:]:
        if arg.startswith("-o"):
            out = arg[2:]
        else:
            k, v = arg.split("=")
            cfg[k] = int(v)
    open(out, "w").write(generate(cfg))
    print("wrote", out)
```
